```python
import torch

def _softmax(x, axis=-1):
    return torch.softmax(x, dim=axis)
def _gelu(x):
    return torch.nn.functional.gelu(x, approximate="tanh")
def _silu(x):
    return torch.nn.functional.silu(x)
def _sigmoid(x):
    return torch.sigmoid(x)
def _layernorm(x, axis=-1, eps=1e-5):
    m = x.mean(dim=axis, keepdim=True)
    v = x.var(dim=axis, keepdim=True, unbiased=False)
    return (x - m) / torch.sqrt(v + eps)
def _scatter_add(tgt, idx, src, axis=0):
    return tgt.clone().index_add_(axis, idx, src)
def _segment_sum(src, seg, n):
    out = torch.zeros((n,) + src.shape[1:], dtype=src.dtype)
    return out.index_add_(0, seg, src)
def _pad(x, pw):
    flat = tuple(v for pair in reversed(pw) for v in pair)
    return torch.nn.functional.pad(x, flat)

kernel_name = 'standalone__modern_conv_block_slak__vision'

def setup_inputs():

    _w = (lambda a: (lambda t: t.to(torch.bfloat16) if t.is_floating_point() else t)(torch.as_tensor(a)))
    H = W = 384
    C = 384
    K = 1
    return {
        "x": _w((lambda *s: torch.randn(*s, dtype=torch.bfloat16) * 0.05)(1, H, W, C)),
        "dw": _w((lambda *s: torch.randn(*s, dtype=torch.bfloat16) * 0.05)(K, K, C)),
        "w1": _w((lambda *s: torch.randn(*s, dtype=torch.bfloat16) * 0.05)(C, 4 * C)),
        "w2": _w((lambda *s: torch.randn(*s, dtype=torch.bfloat16) * 0.05)(4 * C, C)),
        "grn_g": _w((lambda *s: torch.randn(*s, dtype=torch.bfloat16) * 0.05)(4 * C)),
        "grn_b": _w((lambda *s: torch.randn(*s, dtype=torch.bfloat16) * 0.05)(4 * C)),
    }

def reference(x, dw, w1, w2, grn_g, grn_b):
    B, H, W, C = x.shape
    K = dw.shape[0]
    pad = K // 2
    xp = _pad(x, ((0,0),(pad,pad),(pad,pad),(0,0)))
    out = torch.zeros_like(x)
    for i in range(K):
        for j in range(K):
            out = out + xp[:, i:i+H, j:j+W, :] * dw[i, j][None, None, None, :]
    h = _layernorm(out, axis=-1)
    h = _gelu(h @ w1)
    gx = torch.sqrt((h * h).sum(axis=(1, 2), keepdims=True) + 1e-6)
    nx = gx / (gx.mean(axis=-1, keepdims=True) + 1e-6)
    h = grn_g[None, None, None, :] * (h * nx) + grn_b[None, None, None, :] + h
    return x + h @ w2
```

```python
import math, struct, sys

def f32(x):
    return "0x%08x" % struct.unpack("<I", struct.pack("<f", x))[0]

M = 147456; C = 384; H = 1536
TILE = 192; NT = M // TILE
NCH = 48
X_BYTES = M * C * 2
WS_BYTES = 452984832
K0c = 2.0 * math.sqrt(2.0 / math.pi)
LOG2E = 1.4426950408889634
C0 = K0c * LOG2E
C1 = K0c * 0.044715 * LOG2E
GAMMA = C1 ** (1.0 / 3.0)
CC = C0 / GAMMA

class Cfg:
    NC_OUT = 12
    NREP = 8
    H_STORE_FLAGS = ""
    H_LOAD_FLAGS = " nt"
    X1_FLAGS = ""
    X2_FLAGS = ""
    OUT_FLAGS = ""
    HSLOTS = 7
cfg = Cfg()
for a in sys.argv[2:]:
    k, v = a.split("=", 1)
    cur = getattr(cfg, k)
    setattr(cfg, k, int(v) if isinstance(cur, int) else ((" " + v.replace(",", " ")) if v else ""))

NCW = NCH - cfg.NC_OUT
H_WS_BYTES = NT * NCW * 12288
WF_BYTES = C * H * 2
OFF_W1F = H_WS_BYTES
OFF_W2S = OFF_W1F + WF_BYTES
OFF_SUM = OFF_W2S + WF_BYTES
OFF_BP = OFF_SUM + cfg.NREP * H * 4
OFF_BIAS = OFF_BP + 48 * C * 4
assert OFF_BIAS + C * 4 <= WS_BYTES

out = []
def E(s=""):
    out.append(s)
def I(s):
    out.append("    " + s)

def srd(d, base, nbytes, off=0):
    if off:
        I(f"s_add_u32 s{d}, s{base}, {off:#x}")
        I(f"s_addc_u32 s{d+1}, s{base+1}, 0")
        I(f"s_and_b32 s{d+1}, s{d+1}, 0xffff")
    else:
        I(f"s_mov_b32 s{d}, s{base}")
        I(f"s_and_b32 s{d+1}, s{base+1}, 0xffff")
    I(f"s_mov_b32 s{d+2}, {nbytes:#x}")
    I(f"s_mov_b32 s{d+3}, 0x20000")

def head(name):
    E(f".globl {name}")
    E(".p2align 8")
    E(f".type {name},@function")
    E(f"{name}:")

def vr(a, n=4):
    return f"v[{a}:{a+n-1}]"

def interleave(slots, fill, lead=0):
    n = len(slots); k = 0
    for i, s in enumerate(slots):
        for x in s: I(x)
        tgt = min(len(fill), ((i + 1) * len(fill) + n - 1) // n + lead)
        while k < tgt:
            I(fill[k]); k += 1
    while k < len(fill):
        I(fill[k]); k += 1

def load_args():
    I("s_load_dwordx16 s[64:79], s[0:1], 0")
    I("s_load_dwordx2 s[80:81], s[0:1], 64")

def gen_k0():
    head("prep_kernel")
    I("s_cmp_ge_u32 s2, 336")
    I("s_cbranch_scc1 L_k0_end")
    load_args()
    I("s_cmp_ge_u32 s2, 288")
    I("s_cbranch_scc1 L_k0_bias")
    I("v_lshrrev_b32 v1, 6, v0")
    I("v_and_b32 v2, 15, v0")
    I("v_readfirstlane_b32 s3, v1")
    I("v_bfe_u32 v3, v0, 4, 2")
    I("s_lshl_b32 s4, s2, 2")
    I("s_add_u32 s4, s4, s3")
    I("s_mul_i32 s5, s4, 43691")
    I("s_lshr_b32 s5, s5, 19")
    I("s_mul_i32 s6, s5, 12")
    I("s_sub_u32 s6, s4, s6")
    I("s_mul_i32 s7, s6, %d" % (32 * 3072))
    I("s_lshl_b32 s5, s5, 5")
    I("s_add_u32 s7, s7, s5")
    I("v_mul_u32_u24 v4, %d, v3" % (8 * 3072))
    I("v_lshl_add_u32 v4, v2, 1, v4")
    I("s_waitcnt lgkmcnt(0)")
    srd(8, 68, WF_BYTES)
    srd(12, 80, WF_BYTES, OFF_W1F)
    for e in range(8):
        I(f"buffer_load_ushort v{8+e}, v4, s[8:11], s7 offen")
        if e < 7:
            I("s_add_u32 s7, s7, 3072")
    I("v_and_b32 v5, 63, v0")
    I("v_lshlrev_b32 v5, 4, v5")
    I("s_lshl_b32 s4, s4, 10")
    I("s_waitcnt vmcnt(0)")
    for i in range(4):
        I(f"v_lshl_or_b32 v{16+i}, v{9+2*i}, 16, v{8+2*i}")
    I("buffer_store_dwordx4 v[16:19], v5, s[12:15], s4 offen")
    I("s_endpgm")
    E("L_k0_bias:")
    I("s_sub_u32 s3, s2, 288")
    I("s_waitcnt lgkmcnt(0)")
    srd(8, 70, WF_BYTES)
    srd(12, 80, cfg.NREP * H * 4, OFF_SUM)
    srd(16, 80, 48 * C * 4, OFF_BP)
    I("s_lshl_b32 s4, s3, 6")
    I("s_add_u32 s20, s74, s4")
    I("s_addc_u32 s21, s75, 0")
    I("s_load_dwordx16 s[32:47], s[20:21], 0")
    per = cfg.NREP * H * 4 // 48
    assert per % 1024 == 0
    I("v_lshlrev_b32 v1, 2, v0")
    I("v_mov_b32 v2, 0")
    I(f"s_mul_i32 s5, s3, {per}")
    for i in range(per // 1024):
        I(f"buffer_store_dword v2, v1, s[12:15], s5 offen offset:{i*1024}")
    I("v_cmp_gt_u32 vcc, 192, v0")
    I("s_and_saveexec_b64 s[22:23], vcc")
    I("s_cbranch_execz L_k0_end")
    I("s_mul_i32 s6, s3, %d" % (32 * 768))
    for r in range(32):
        I(f"buffer_load_dword v{8+r}, v1, s[8:11], s6 offen offset:{(r%4)*768}")
        if r % 4 == 3 and r < 31:
            I("s_add_u32 s6, s6, 3072")
    I("v_mov_b32 v4, 0")
    I("v_mov_b32 v5, 0")
    I("s_waitcnt lgkmcnt(0)")
    for r in range(32):
        I(f"s_waitcnt vmcnt({31-r})")
        if r % 2 == 0:
            I(f"s_lshl_b32 s7, s{32+r//2}, 16")
        else:
            I(f"s_and_b32 s7, s{32+r//2}, 0xffff0000")
        I(f"v_lshlrev_b32 v6, 16, v{8+r}")
        I(f"v_and_b32 v7, 0xffff0000, v{8+r}")
        I("v_fmac_f32 v4, s7, v6")
        I("v_fmac_f32 v5, s7, v7")
    I("v_lshlrev_b32 v1, 3, v0")
    I("s_mul_i32 s6, s3, %d" % (C * 4))
    I("buffer_store_dwordx2 v[4:5], v1, s[16:19], s6 offen")
    E("L_k0_end:")
    I("s_endpgm")

K1_SLOT = 24576
K1_SUM = 3 * K1_SLOT
K1_DW = K1_SUM + H * 4
K1_LDS = K1_DW + C * 4
def gen_k1():
    A = lambda j, s: 112 + (j * 12 + s) * 4
    ACC = lambda a, j: 88 + 12 * a + 4 * j
    BF = lambda b, i: 56 + 16 * b + 4 * i
    OUT = lambda j: 44 + 4 * j
    TMP = 32
    V_L16, V_RD, V_SUM, V_ST, V_SQ, V_X = 1, 2, 3, 4, 5, 6
    S_W, S_RDS, S_DMS, S_WOFF, S_HOFF, S_CNT, S_NEGC, S_T = 3, 4, 5, 6, 7, 24, 25, 26
    head("ln_gemm1_kernel")
    I(f"s_cmp_ge_u32 s2, {NT}")
    I("s_cbranch_scc1 L_k1_end")
    load_args()
    I("v_lshrrev_b32 v8, 6, v0")
    I("v_and_b32 v9, 63, v0")
    I(f"v_readfirstlane_b32 s{S_W}, v8")
    I("v_and_b32 v10, 15, v0")
    I("v_bfe_u32 v11, v0, 4, 2")
    I(f"v_lshlrev_b32 v{V_L16}, 4, v9")
    I(f"v_mul_u32_u24 v{V_X}, 768, v10")
    I(f"v_lshl_add_u32 v{V_X}, v11, 4, v{V_X}")
    I(f"s_mul_i32 s{S_T}, s2, {TILE}")
    I(f"s_mul_i32 s27, s{S_W}, 48")
    I(f"s_add_u32 s{S_T}, s{S_T}, s27")
    I(f"s_mul_i32 s{S_T}, s{S_T}, 768")
    I("s_waitcnt lgkmcnt(0)")
    srd(8, 64, X_BYTES)
    srd(28, 66, C * 2)
    I("v_lshlrev_b32 v12, 2, v0")
    I("buffer_load_dword v13, v12, s[28:31], 0 offen")
    for j in range(3):
        for s in range(12):
            I(f"buffer_load_dwordx4 {vr(A(j,s))}, v{V_X}, s[8:11], s{S_T} offen offset:{s*64}{cfg.X1_FLAGS}")
        if j < 2:
            I(f"s_add_u32 s{S_T}, s{S_T}, 12288")
    srd(12, 80, WF_BYTES, OFF_W1F)
    srd(16, 80, H_WS_BYTES)
    srd(20, 80, cfg.NREP * H * 4, OFF_SUM)
    I(f"s_mul_i32 s{S_WOFF}, s{S_W}, 6144")
    I(f"s_mov_b32 s{S_DMS}, s{S_WOFF}")
    def dma_ops():
        ops = [f"s_mov_b32 m0, s{S_DMS}", "s_nop 0"]
        for i in range(4):
            ops.append(f"buffer_load_dwordx4 v{V_L16}, s[12:15], s{S_WOFF} offen offset:{i*1024} lds")
        ops.append("s_add_u32 m0, m0, 4096")
        ops.append(f"s_add_u32 s{S_WOFF}, s{S_WOFF}, 4096")
        for i in range(2):
            ops.append(f"buffer_load_dwordx4 v{V_L16}, s[12:15], s{S_WOFF} offen offset:{i*1024} lds")
        ops.append(f"s_add_u32 s{S_WOFF}, s{S_WOFF}, {K1_SLOT-4096}")
        ops.append(f"s_add_u32 s{S_DMS}, s{S_DMS}, {K1_SLOT}")
        ops.append(f"s_cmp_ge_u32 s{S_DMS}, {3*K1_SLOT}")
        ops.append(f"s_cselect_b32 s27, {3*K1_SLOT}, 0")
        ops.append(f"s_sub_u32 s{S_DMS}, s{S_DMS}, s27")
        return ops
    for _ in range(3):
        for o in dma_ops(): I(o)
    I("v_mov_b32 v14, 0")
    I("v_mov_b32 v15, 0")
    I("v_lshlrev_b32 v12, 3, v0")
    I(f"v_add_u32 v16, {K1_SUM}, v12")
    for i in range(3):
        I(f"ds_write_b64 v16, v[14:15] offset:{i*2048}")
    I("s_waitcnt vmcnt(54)")
    I("v_lshlrev_b32 v14, 16, v13")
    I("v_and_b32 v15, 0xffff0000, v13")
    I("v_cmp_gt_u32 vcc, 192, v0")
    I("s_and_saveexec_b64 s[34:35], vcc")
    I(f"ds_write_b64 v16, v[14:15] offset:{K1_DW-K1_SUM}")
    I("s_mov_b64 exec, s[34:35]")
    I(f"v_lshlrev_b32 v{V_SUM}, 2, v10")
    I(f"v_add_u32 v{V_SUM}, {K1_SUM}, v{V_SUM}")
    I("v_lshrrev_b32 v12, 2, v10")
    I(f"v_lshlrev_b32 v{V_ST}, 8, v12")
    I(f"v_lshl_add_u32 v{V_ST}, v11, 6, v{V_ST}")
    I("v_and_b32 v12, 3, v10")
    I(f"v_lshl_add_u32 v{V_ST}, v12, 4, v{V_ST}")
    I(f"s_mul_i32 s{S_HOFF}, s2, {NCW*12288}")
    I(f"s_mul_i32 s27, s{S_W}, 3072")
    I(f"s_add_u32 s{S_HOFF}, s{S_HOFF}, s27")
    I(f"s_mul_i32 s36, s2, {TILE*768}")
    I("s_add_u32 s36, s36, s27")
    I("s_and_b32 s37, s77, 0xffff")
    I(f"s_mov_b32 s{S_NEGC}, {f32(-CC)}")
    I(f"v_lshlrev_b32 v7, 5, v11")
    I(f"v_add_u32 v7, {K1_DW}, v7")
    I("s_waitcnt lgkmcnt(0)")
    I("s_barrier")
    DWR = lambda s: 32 + 8 * (s % 4)
    T0 = 64
    for j in range(3):
        for s in range(3):
            I(f"ds_read_b128 {vr(DWR(s))}, v7 offset:{s*128}")
            I(f"ds_read_b128 {vr(DWR(s)+4)}, v7 offset:{s*128+16}")
        I(f"s_waitcnt vmcnt({18 + 12*(2-j)})")
        for s in range(12):
            if s + 3 < 12:
                I(f"ds_read_b128 {vr(DWR(s+3))}, v7 offset:{(s+3)*128}")
                I(f"ds_read_b128 {vr(DWR(s+3)+4)}, v7 offset:{(s+3)*128+16}")
            I(f"s_waitcnt lgkmcnt({min(6, 2*(11-s))})")
            R = [A(j, s) + i for i in range(4)]
            T = [T0 + 4 * s + i for i in range(4)]
            d = DWR(s)
            for i in range(4): I(f"v_lshlrev_b32 v{T[i]}, 16, v{R[i]}")
            for i in range(4): I(f"v_and_b32 v{R[i]}, 0xffff0000, v{R[i]}")
            for i in range(4): I(f"v_mul_f32 v{T[i]}, v{T[i]}, v{d+2*i}")
            for i in range(4): I(f"v_mul_f32 v{R[i]}, v{R[i]}, v{d+2*i+1}")
            for i in range(4):
                if s == 0 and i == 0:
                    I(f"v_mov_b32 v16, v{T[i]}")
                    I(f"v_mov_b32 v17, v{R[i]}")
                    I(f"v_mul_f32 v18, v{T[i]}, v{T[i]}")
                    I(f"v_mul_f32 v19, v{R[i]}, v{R[i]}")
                else:
                    I(f"v_add_f32 v16, v16, v{T[i]}")
                    I(f"v_add_f32 v17, v17, v{R[i]}")
                    I(f"v_fmac_f32 v18, v{T[i]}, v{T[i]}")
                    I(f"v_fmac_f32 v19, v{R[i]}, v{R[i]}")
        I("v_add_f32 v16, v16, v17")
        I("v_add_f32 v18, v18, v19")
        for sw in ("v_permlane16_swap_b32", "v_permlane32_swap_b32"):
            I("v_mov_b32 v17, v16")
            I("v_mov_b32 v19, v18")
            I("s_nop 1")
            I(f"{sw} v16, v17")
            I(f"{sw} v18, v19")
            I("s_nop 1")
            I("v_add_f32 v16, v16, v17")
            I("v_add_f32 v18, v18, v19")
        I(f"v_mul_f32 v16, {f32(1.0/C)}, v16")
        I(f"v_mul_f32 v18, {f32(1.0/C)}, v18")
        I("v_fma_f32 v18, -v16, v16, v18")
        I("v_max_f32 v18, 0, v18")
        I(f"v_add_f32 v18, {f32(1e-5)}, v18")
        I("v_rsq_f32 v18, v18")
        I("s_nop 0")
        I(f"v_mul_f32 v18, {f32(GAMMA)}, v18")
        I("v_mul_f32 v16, v16, v18")
        for s in range(12):
            R = [A(j, s) + i for i in range(4)]
            T = [T0 + 4 * s + i for i in range(4)]
            for i in range(4): I(f"v_fma_f32 v{T[i]}, v{T[i]}, v18, -v16")
            for i in range(4): I(f"v_fma_f32 v{R[i]}, v{R[i]}, v18, -v16")
            for i in range(4): I(f"v_cvt_pk_bf16_f32 v{R[i]}, v{T[i]}, v{R[i]}")
    def gelu(a, t, store):
        ops = []
        for j in range(3):
            z = [ACC(a, j) + r for r in range(4)]
            tt = [TMP + 4 * j + r for r in range(4)]
            ops += [f"v_fma_f32 v{tt[r]}, -v{z[r]}, v{z[r]}, s{S_NEGC}" for r in range(4)]
            ops += [f"v_mul_f32 v{tt[r]}, v{z[r]}, v{tt[r]}" for r in range(4)]
            ops += [f"v_exp_f32 v{tt[r]}, v{tt[r]}" for r in range(4)]
            ops += [f"v_add_f32 v{tt[r]}, 1.0, v{tt[r]}" for r in range(4)]
            ops += [f"v_rcp_f32 v{tt[r]}, v{tt[r]}" for r in range(4)]
            ops += [f"v_mul_f32 v{tt[r]}, v{z[r]}, v{tt[r]}" for r in range(4)]
            ops += [f"v_cvt_pk_bf16_f32 v{OUT(j)+2*t}, v{tt[0]}, v{tt[1]}",
                    f"v_cvt_pk_bf16_f32 v{OUT(j)+2*t+1}, v{tt[2]}, v{tt[3]}"]
            for r in range(4):
                if j == 0 and r == 0:
                    ops.append(f"v_mul_f32 v{V_SQ}, v{tt[r]}, v{tt[r]}")
                else:
                    ops.append(f"v_fmac_f32 v{V_SQ}, v{tt[r]}, v{tt[r]}")
            if store:
                ops.append(f"buffer_store_dwordx4 {vr(OUT(j))}, v{V_ST}, s[16:19], s{S_HOFF} offen offset:{j*1024}{cfg.H_STORE_FLAGS}")
        ops.append(f"ds_add_f32 v{V_SUM}, v{V_SQ} offset:{64*t}")
        if t == 1:
            ops.append(f"v_add_u32 v{V_SUM}, 128, v{V_SUM}")
            ops.append(f"s_add_u32 s{S_HOFF}, s{S_HOFF}, 12288")
            ops.append(f"s_cmp_eq_u32 s{S_CNT}, {NCW}")
            ops.append(f"s_cselect_b32 s{S_HOFF}, s36, s{S_HOFF}")
            ops.append("s_cselect_b32 s16, s76, s16")
            ops.append("s_cselect_b32 s17, s37, s17")
            ops.append(f"s_cselect_b32 s18, {X_BYTES:#x}, s18")
        return ops
    def reads(G):
        return [f"ds_read_b128 {vr(BF(G%2, i))}, v{V_RD} offset:{(G*4+i)*1024}" for i in range(4)]
    def half(t, fill, vm):
        slots = []
        for g in range(3):
            G = 3 * t + g
            for j in range(3):
                for i in range(4):
                    pre = []
                    if j == 0 and i == 0:
                        if G == 5:
                            pre.append(f"s_waitcnt vmcnt({vm}) lgkmcnt(0)")
                            pre.append("s_barrier")
                            pre.append(f"s_add_u32 s{S_RDS}, s{S_RDS}, {K1_SLOT}")
                            pre.append(f"s_cmp_ge_u32 s{S_RDS}, {3*K1_SLOT}")
                            pre.append(f"s_cselect_b32 s{S_RDS}, 0, s{S_RDS}")
                            pre.append(f"v_add_u32 v{V_RD}, s{S_RDS}, v{V_L16}")
                        else:
                            pre.append("s_waitcnt lgkmcnt(0)")
                    s = 4 * g + i
                    c = "0" if s == 0 else vr(ACC(t, j))
                    sl = pre + [f"v_mfma_f32_16x16x32_bf16 {vr(ACC(t,j))}, {vr(A(j,s))}, {vr(BF(G%2,i))}, {c}"]
                    if j == 0:
                        sl.append(reads((G + 1) % 6)[i])
                    if G == 5 and j >= 1:
                        d = dma_ops()
                        k = (j - 1) * 4 + i
                        parts = [d[0:3], d[3:4], d[4:5], d[5:6], d[6:9], d[9:10], d[10:12], d[12:]]
                        sl += parts[k]
                    slots.append(sl)
        interleave(slots, fill)
    I(f"s_mov_b32 s{S_RDS}, 0")
    I(f"v_mov_b32 v{V_RD}, v{V_L16}")
    I("s_waitcnt vmcnt(12)")
    I("s_barrier")
    for o in reads(0): I(o)
    I(f"s_mov_b32 s{S_CNT}, 0")
    half(0, [], 0)
    half(1, gelu(0, 0, False), 6)
    I(f"s_mov_b32 s{S_CNT}, 1")
    half(0, gelu(1, 1, True), 0)
    half(1, gelu(0, 0, False), 9)
    I(f"s_mov_b32 s{S_CNT}, 2")
    E(".p2align 6")
    E("L_k1_loop:")
    half(0, gelu(1, 1, True), 0)
    half(1, gelu(0, 0, False), 12)
    I(f"s_add_u32 s{S_CNT}, s{S_CNT}, 1")
    I(f"s_cmp_lt_u32 s{S_CNT}, {NCH}")
    I("s_cbranch_scc1 L_k1_loop")
    I("s_nop 7")
    for o in gelu(1, 1, True): I(o)
    I("s_waitcnt lgkmcnt(0)")
    I("s_barrier")
    I("v_lshlrev_b32 v12, 2, v0")
    I(f"v_add_u32 v13, {K1_SUM}, v12")
    for i in range(6):
        I(f"ds_read_b32 v{16+i}, v13 offset:{i*1024}")
    I(f"s_and_b32 s27, s2, {cfg.NREP-1}")
    I(f"s_mul_i32 s27, s27, {H*4}")
    I("s_add_u32 s26, s27, 4096")
    for i in range(6):
        I(f"s_waitcnt lgkmcnt({5-i})")
        I(f"buffer_atomic_add_f32 v{16+i}, v12, s[20:23], s{27 if i < 4 else 26} offen offset:{(i%4)*1024}")
    E("L_k1_end:")
    I("s_endpgm")

def gen_kmid():
    head("grn_kernel")
    I("s_cmp_gt_u32 s2, 144")
    I("s_cbranch_scc1 L_km_end")
    load_args()
    I("s_cmp_eq_u32 s2, 144")
    I("s_cbranch_scc1 L_km_bias")
    I("v_lshrrev_b32 v1, 6, v0")
    I("v_and_b32 v2, 15, v0")
    I("v_readfirstlane_b32 s3, v1")
    I("v_bfe_u32 v3, v0, 4, 2")
    I("s_mul_i32 s4, s2, 43691")
    I("s_lshr_b32 s4, s4, 17")
    I("s_mul_i32 s5, s4, 3")
    I("s_sub_u32 s5, s2, s5")
    I("s_lshl_b32 s5, s5, 3")
    I("s_add_u32 s5, s5, s3")
    I("s_lshr_b32 s6, s5, 1")
    I("s_lshl_b32 s6, s6, 5")
    I("s_and_b32 s7, s5, 1")
    I("s_lshl_b32 s7, s7, 2")
    I("s_add_u32 s6, s6, s7")
    I("v_lshrrev_b32 v4, 2, v2")
    I("v_lshlrev_b32 v4, 3, v4")
    I("v_and_b32 v5, 3, v2")
    I("v_add3_u32 v4, v4, v5, s6")
    I("v_and_b32 v5, 1, v3")
    I("v_lshlrev_b32 v5, 4, v5")
    I("v_lshrrev_b32 v6, 1, v3")
    I("v_lshl_add_u32 v5, v6, 2, v5")
    I("v_mul_u32_u24 v6, 768, v5")
    I("v_lshl_add_u32 v6, v4, 1, v6")
    I("s_mul_i32 s7, s4, %d" % (32 * 768))
    I("s_waitcnt lgkmcnt(0)")
    srd(8, 70, WF_BYTES)
    srd(12, 80, cfg.NREP * H * 4, OFF_SUM)
    srd(16, 80, WF_BYTES, OFF_W2S)
    srd(20, 72, H * 2)
    I("v_lshlrev_b32 v7, 2, v0")
    I("s_mov_b32 s24, 0")
    for r in range(cfg.NREP):
        for a in range(3):
            if a == 2:
                I("s_add_u32 s24, s24, 4096")
            I(f"buffer_load_dword v{32 + r*3 + a}, v7, s[12:15], s24 offen offset:{(a%2)*2048}")
        I("s_add_u32 s24, s24, 2048")
    I("s_add_u32 s25, s7, %d" % (8 * 768))
    for e in range(8):
        I(f"buffer_load_ushort v{8+e}, v6, s[8:11], s{7 if e < 4 else 25} offen offset:{(e%4)*768}")
    I("v_and_b32 v16, 31, v0")
    I("v_lshlrev_b32 v17, 1, v16")
    I("s_lshl_b32 s26, s4, 6")
    I("buffer_load_ushort v18, v17, s[20:23], s26 offen")
    I("s_waitcnt vmcnt(9)")
    for a in range(3):
        for r in range(1, cfg.NREP):
            I(f"v_add_f32 v{32+a}, v{32+a}, v{32+r*3+a}")
    I(f"s_mov_b32 s27, {f32(1.0/(GAMMA*GAMMA))}")
    I(f"v_mov_b32 v19, {f32(1e-6)}")
    for a in range(3):
        I(f"v_fma_f32 v{32+a}, v{32+a}, s27, v19")
    for a in range(3):
        I(f"v_sqrt_f32 v{32+a}, v{32+a}")
    I("s_nop 0")
    for a in range(3):
        I(f"ds_write_b32 v7, v{32+a} offset:{a*2048}")
    I("v_add_f32 v20, v32, v33")
    I("v_add_f32 v20, v20, v34")
    for ror in (8, 4, 2, 1):
        I("s_nop 1")
        I(f"v_add_f32_dpp v20, v20, v20 row_ror:{ror} row_mask:0xf bank_mask:0xf")
    for sw in ("v_permlane16_swap_b32", "v_permlane32_swap_b32"):
        I("v_mov_b32 v21, v20")
        I("s_nop 1")
        I(f"{sw} v20, v21")
        I("s_nop 1")
        I("v_add_f32 v20, v20, v21")
    I("v_lshlrev_b32 v21, 2, v1")
    I("ds_write_b32 v21, v20 offset:6144")
    I("s_waitcnt lgkmcnt(0)")
    I("s_barrier")
    I("v_mov_b32 v21, 0")
    I("ds_read_b128 v[24:27], v21 offset:6144")
    I("ds_read_b128 v[28:31], v21 offset:6160")
    I("s_lshl_b32 s26, s4, 7")
    I("v_lshl_add_u32 v22, v16, 2, s26")
    I("ds_read_b32 v23, v22")
    I("s_waitcnt lgkmcnt(0)")
    for i in range(1, 8):
        I(f"v_add_f32 v24, v24, v{24+i}")
    I(f"v_mov_b32 v25, {f32(1.0/H)}")
    I("v_fma_f32 v24, v24, v25, v19")
    I("v_rcp_f32 v24, v24")
    I("s_waitcnt vmcnt(0)")
    I("v_lshlrev_b32 v18, 16, v18")
    I("v_mul_f32 v23, v23, v24")
    I("v_fma_f32 v23, v23, v18, 1.0")
    I(f"v_mul_f32 v23, {f32(1.0/GAMMA)}, v23")
    I("v_lshlrev_b32 v21, 7, v1")
    I("v_lshl_add_u32 v22, v16, 2, v21")
    I("ds_write_b32 v22, v23 offset:6400")
    I("v_lshl_add_u32 v22, v5, 2, v21")
    I("s_waitcnt lgkmcnt(0)")
    I("ds_read_b128 v[24:27], v22 offset:6400")
    I("ds_read_b128 v[28:31], v22 offset:6432")
    for e in range(8):
        I(f"v_lshlrev_b32 v{8+e}, 16, v{8+e}")
    I("s_waitcnt lgkmcnt(0)")
    for e in range(8):
        I(f"v_mul_f32 v{8+e}, v{8+e}, v{24+e}")
    for i in range(4):
        I(f"v_cvt_pk_bf16_f32 v{24+i}, v{8+2*i}, v{9+2*i}")
    I("v_and_b32 v21, 63, v0")
    I("v_lshlrev_b32 v21, 4, v21")
    I("s_mul_i32 s26, s4, 24")
    I("s_add_u32 s26, s26, s5")
    I("s_lshl_b32 s26, s26, 10")
    I("buffer_store_dwordx4 v[24:27], v21, s[16:19], s26 offen")
    I("s_endpgm")
    E("L_km_bias:")
    I("s_waitcnt lgkmcnt(0)")
    srd(8, 80, 48 * C * 4, OFF_BP)
    srd(12, 80, C * 4, OFF_BIAS)
    I("v_cmp_gt_u32 vcc, 384, v0")
    I("s_and_saveexec_b64 s[22:23], vcc")
    I("s_cbranch_execz L_km_end")
    I("v_and_b32 v1, 0x1e0, v0")
    I("v_bfe_u32 v2, v0, 2, 2")
    I("v_lshl_add_u32 v1, v2, 3, v1")
    I("v_bfe_u32 v2, v0, 4, 1")
    I("v_lshl_add_u32 v1, v2, 2, v1")
    I("v_and_b32 v2, 3, v0")
    I("v_add_lshl_u32 v1, v1, v2, 2")
    I("s_mov_b32 s4, 0")
    for g in range(48):
        I(f"buffer_load_dword v{8+g}, v1, s[8:11], s4 offen offset:{(g%2)*1536}")
        if g % 2 == 1:
            I("s_add_u32 s4, s4, 3072")
    for g in range(1, 48):
        I(f"s_waitcnt vmcnt({47-g})")
        I(f"v_add_f32 v8, v8, v{8+g}")
    I("v_lshlrev_b32 v2, 2, v0")
    I("buffer_store_dword v8, v2, s[12:15], 0 offen")
    E("L_km_end:")
    I("s_endpgm")

K2_WSLOT = 24576
K2_HBASE = 3 * K2_WSLOT
K2_HSLOT = 12288
def gen_k2():
    HS = cfg.HSLOTS
    K2_BIAS = K2_HBASE + HS * K2_HSLOT
    ACC = lambda i, j: 112 + (i * 6 + j) * 4
    WF = lambda b, i: 16 + 48 * b + 4 * i
    HF = lambda b, j: 40 + 48 * b + 4 * j
    V_L16, V_WB, V_HB, V_W, V_H, V_X, V_BI, V_SEL = 1, 2, 3, 4, 5, 6, 7, 8
    S_W, S_WRD, S_HRD, S_DMS, S_OFF, S_LC, S_STEP, S_TILE, S_XOFF, S_LT, S_RND = 3, 4, 5, 6, 7, 24, 25, 26, 27, 28, 29
    head("gemm2_kernel")
    I("s_cmp_ge_u32 s2, 256")
    I("s_cbranch_scc1 L_k2_end")
    load_args()
    I("v_lshrrev_b32 v14, 6, v0")
    I("v_and_b32 v15, 63, v0")
    I(f"v_readfirstlane_b32 s{S_W}, v14")
    I(f"v_lshlrev_b32 v{V_L16}, 4, v15")
    I("v_and_b32 v16, 15, v0")
    I("v_bfe_u32 v17, v0, 4, 2")
    I(f"s_and_b32 s30, s{S_W}, 3")
    I(f"s_lshr_b32 s31, s{S_W}, 2")
    I("s_mul_i32 s32, s30, 6144")
    I(f"v_add_u32 v{V_WB}, s32, v{V_L16}")
    I("v_lshrrev_b32 v18, 1, v17")
    I(f"v_lshlrev_b32 v{V_HB}, 8, v18")
    I("v_and_b32 v18, 3, v16")
    I(f"v_lshl_add_u32 v{V_HB}, v18, 6, v{V_HB}")
    I("v_lshrrev_b32 v18, 2, v16")
    I(f"v_lshl_add_u32 v{V_HB}, v18, 4, v{V_HB}")
    I("v_and_b32 v18, 1, v17")
    I(f"v_lshl_add_u32 v{V_HB}, v18, 3, v{V_HB}")
    I("s_mul_i32 s33, s31, 6144")
    I(f"s_add_u32 s33, s33, {K2_HBASE}")
    I(f"v_add_u32 v{V_HB}, s33, v{V_HB}")
    I(f"v_mul_u32_u24 v{V_X}, 768, v16")
    I(f"v_lshl_add_u32 v{V_X}, v17, 4, v{V_X}")
    I("s_mul_i32 s33, s30, 384")
    I(f"s_add_u32 s33, s33, {K2_BIAS}")
    I(f"v_lshl_add_u32 v{V_BI}, v17, 4, s33")
    for k in (0, 1, 4, 5):
        I(f"v_mov_b32 v{V_SEL+k}, 0")
    I("v_and_b32 v18, 1, v16")
    I("v_lshlrev_b32 v18, 4, v18")
    I("v_mov_b32 v19, 0x3f80")
    I("v_lshlrev_b32 v19, v18, v19")
    I("v_lshrrev_b32 v18, 1, v16")
    I("v_lshlrev_b32 v20, 1, v17")
    I("v_cmp_eq_u32 vcc, v18, v20")
    I("s_nop 1")
    I(f"v_cndmask_b32 v{V_SEL+2}, 0, v19, vcc")
    I("v_add_u32 v20, 1, v20")
    I("v_cmp_eq_u32 vcc, v18, v20")
    I("s_nop 1")
    I(f"v_cndmask_b32 v{V_SEL+3}, 0, v19, vcc")
    I("s_waitcnt lgkmcnt(0)")
    srd(12, 64, X_BYTES)
    srd(16, 76, X_BYTES)
    srd(20, 80, C * 4, OFF_BIAS)
    I("s_and_b32 s37, s77, 0xffff")
    I("s_and_b32 s38, s81, 0xffff")
    I("v_lshlrev_b32 v18, 2, v0")
    I("buffer_load_dword v19, v18, s[20:23], 0 offen")
    I(f"s_add_u32 s{S_TILE}, s2, 512")
    I(f"s_mul_i32 s34, s31, {96*768}")
    I("s_mul_i32 s35, s30, 192")
    I("s_add_u32 s34, s34, s35")
    I(f"s_mov_b32 s{S_WRD}, 0")
    I(f"s_mov_b32 s{S_HRD}, 0")
    I(f"s_mov_b32 s{S_RND}, 0")
    I("s_cmp_eq_u32 s31, 0")
    I("s_cbranch_scc0 L_k2_H")

    def role(r):
        if r == "W":
            NLD, VM, DEPTH = 6, 6, 3
            srd(8, 80, WF_BYTES, OFF_W2S)
            I(f"s_mov_b32 s{S_OFF}, s32")
            I(f"s_mov_b32 s{S_DMS}, s32")
            I(f"s_add_u32 s39, s32, {WF_BYTES}")
            def dma():
                ops = [[f"s_mov_b32 m0, s{S_DMS}", "s_nop 0",
                        f"buffer_load_dwordx4 v{V_L16}, s[8:11], s{S_OFF} offen lds"]]
                for i in (1, 2, 3):
                    ops.append([f"buffer_load_dwordx4 v{V_L16}, s[8:11], s{S_OFF} offen offset:{i*1024} lds"])
                ops.append(["s_add_u32 m0, m0, 4096", f"s_add_u32 s{S_OFF}, s{S_OFF}, 4096",
                            f"buffer_load_dwordx4 v{V_L16}, s[8:11], s{S_OFF} offen lds"])
                ops.append([f"buffer_load_dwordx4 v{V_L16}, s[8:11], s{S_OFF} offen offset:1024 lds"])
                ops.append([f"s_add_u32 s{S_OFF}, s{S_OFF}, {K2_WSLOT-4096}",
                            f"s_cmp_ge_u32 s{S_OFF}, s39",
                            f"s_cselect_b32 s{S_OFF}, s32, s{S_OFF}"])
                ops.append([f"s_add_u32 s{S_DMS}, s{S_DMS}, {K2_WSLOT}",
                            f"s_cmp_ge_u32 s{S_DMS}, {3*K2_WSLOT}",
                            f"s_cselect_b32 s{S_DMS}, s32, s{S_DMS}"])
                return ops
        else:
            NLD, VM, DEPTH = 3, 3 * (HS - 2), HS
            srd(8, 80, H_WS_BYTES)
            I("s_mul_i32 s40, s30, 3072")
            I(f"s_add_u32 s41, s40, {K2_HBASE}")
            I(f"s_mov_b32 s{S_DMS}, s41")
            I(f"s_mov_b32 s{S_LT}, s{S_TILE}")
            I(f"s_mul_i32 s{S_OFF}, s{S_LT}, {NCW*12288}")
            I(f"s_add_u32 s{S_OFF}, s{S_OFF}, s40")
            I(f"s_mov_b32 s{S_LC}, 0")
            def dma():
                ops = [[f"s_mov_b32 m0, s{S_DMS}", "s_nop 0",
                        f"buffer_load_dwordx4 v{V_L16}, s[8:11], s{S_OFF} offen{cfg.H_LOAD_FLAGS} lds"]]
                for i in (1, 2):
                    ops.append([f"buffer_load_dwordx4 v{V_L16}, s[8:11], s{S_OFF} offen offset:{i*1024}{cfg.H_LOAD_FLAGS} lds"])
                ops.append([f"s_add_u32 s{S_DMS}, s{S_DMS}, {K2_HSLOT}",
                            f"s_cmp_ge_u32 s{S_DMS}, {K2_BIAS}",
                            f"s_cselect_b32 s{S_DMS}, s41, s{S_DMS}"])
                ops.append([f"s_add_u32 s{S_OFF}, s{S_OFF}, 12288",
                            f"s_add_u32 s{S_LC}, s{S_LC}, 1",
                            f"s_mul_i32 s42, s{S_LT}, {TILE*768}",
                            "s_add_u32 s42, s42, s40"])
                ops.append([f"s_cmp_eq_u32 s{S_LC}, {NCW}",
                            f"s_cselect_b32 s{S_OFF}, s42, s{S_OFF}",
                            "s_cselect_b32 s8, s76, s8",
                            "s_cselect_b32 s9, s37, s9",
                            f"s_cselect_b32 s10, {X_BYTES:#x}, s10"])
                ops.append([f"s_sub_u32 s43, s{S_LT}, 256",
                            f"s_cselect_b32 s44, 0, {H_WS_BYTES:#x}",
                            f"s_mul_i32 s42, s43, {NCW*12288}",
                            "s_add_u32 s42, s42, s40"])
                ops.append([f"s_cmp_eq_u32 s{S_LC}, {NCH}",
                            f"s_cselect_b32 s{S_OFF}, s42, s{S_OFF}",
                            "s_cselect_b32 s8, s80, s8",
                            "s_cselect_b32 s9, s38, s9",
                            "s_cselect_b32 s10, s44, s10",
                            f"s_cselect_b32 s{S_LT}, s43, s{S_LT}",
                            f"s_cselect_b32 s{S_LC}, 0, s{S_LC}"])
                return ops
        for _ in range(DEPTH):
            for grp in dma():
                for o in grp: I(o)
        I(f"s_waitcnt vmcnt({NLD*DEPTH})")
        I("v_cmp_gt_u32 vcc, 384, v0")
        I("s_and_saveexec_b64 s[46:47], vcc")
        I(f"v_add_u32 v18, {K2_BIAS}, v18")
        I("ds_write_b32 v18, v19")
        I("s_mov_b64 exec, s[46:47]")
        I(f"s_waitcnt vmcnt({NLD*(DEPTH-1)}) lgkmcnt(0)")
        I("s_barrier")

        def adv_rd():
            return [f"v_add_u32 v{V_W}, s{S_WRD}, v{V_WB}",
                    f"v_add_u32 v{V_H}, s{S_HRD}, v{V_HB}",
                    f"s_add_u32 s{S_WRD}, s{S_WRD}, {K2_WSLOT}",
                    f"s_cmp_ge_u32 s{S_WRD}, {3*K2_WSLOT}",
                    f"s_cselect_b32 s{S_WRD}, 0, s{S_WRD}",
                    f"s_add_u32 s{S_HRD}, s{S_HRD}, {K2_HSLOT}",
                    f"s_cmp_ge_u32 s{S_HRD}, {HS*K2_HSLOT}",
                    f"s_cselect_b32 s{S_HRD}, 0, s{S_HRD}"]
        def frag_reads(b):
            ops = []
            for k in range(6):
                ops.append(f"ds_read_b128 {vr(WF(b,k))}, v{V_W} offset:{k*1024}")
                ops.append(f"ds_read_b64_tr_b16 {vr(HF(b,k),2)}, v{V_H} offset:{k*1024}")
                ops.append(f"ds_read_b64_tr_b16 {vr(HF(b,k)+2,2)}, v{V_H} offset:{k*1024+512}")
            return ops
        def xload(n, reg):
            j, u = divmod(n, 3)
            return (j, u, reg)
        def step(b, vm, last=False):
            if vm is None:
                I("s_waitcnt lgkmcnt(0)")
            else:
                I(f"s_waitcnt vmcnt({vm}) lgkmcnt(0)")
            I("s_barrier")
            extra = [[] for _ in range(36)]
            if not last:
                a = adv_rd()
                extra[0] += a[:2]
                extra[1] += a[2:5]
                extra[2] += a[5:]
                for k, o in enumerate(frag_reads(1 - b)):
                    extra[1 + k].append(o)
                for k, grp in enumerate(dma()):
                    extra[20 + 2 * k] += grp
            else:
                extra[0] += [f"s_mul_i32 s{S_XOFF}, s{S_TILE}, {TILE*768}", f"s_add_u32 s{S_XOFF}, s{S_XOFF}, s34",
                             f"s_mov_b32 s45, s{S_XOFF}"]
                for n in range(12):
                    j, u = divmod(n, 3)
                    extra[1 + n].append(f"buffer_load_dwordx4 {vr(16+48*(1-b)+4*n)}, v{V_X}, s[12:15], s45 offen offset:{u*64}{cfg.X2_FLAGS}")
                    if u == 2:
                        extra[1 + n].append("s_add_u32 s45, s45, 12288")
                for k, grp in enumerate(dma()):
                    extra[20 + 2 * k] += grp
            k = 0
            for i in range(6):
                for jj in range(6):
                    j = jj if i % 2 == 0 else 5 - jj
                    I(f"v_mfma_f32_16x16x32_bf16 {vr(ACC(i,j))}, {vr(WF(b,i))}, {vr(HF(b,j))}, {vr(ACC(i,j))}")
                    for o in extra[k]: I(o)
                    k += 1
        def bias_init(js):
            for j in js:
                for i in range(6):
                    I(f"ds_read_b128 {vr(ACC(i,j))}, v{V_BI} offset:{i*64}")
        bias_init(range(6))
        E(f"L_k2_{r}_tile:")
        for o in adv_rd(): I(o)
        for o in frag_reads(0): I(o)
        I(f"s_cmp_eq_u32 s{S_RND}, 0")
        I(f"s_cbranch_scc0 L_k2_{r}_nw")
        I(f"s_waitcnt vmcnt({NLD*(DEPTH-3)})")
        E(f"L_k2_{r}_nw:")
        step(0, None)
        step(1, None)
        I(f"s_mov_b32 s{S_STEP}, 2")
        E(".p2align 6")
        E(f"L_k2_{r}_loop:")
        step(0, VM)
        step(1, VM)
        I(f"s_add_u32 s{S_STEP}, s{S_STEP}, 2")
        I(f"s_cmp_lt_u32 s{S_STEP}, 46")
        I(f"s_cbranch_scc1 L_k2_{r}_loop")
        step(0, VM)
        step(1, VM, last=True)
        for n in range(12, 18):
            j, u = divmod(n, 3)
            I(f"buffer_load_dwordx4 {vr(64+4*(n-12))}, v{V_X}, s[12:15], s45 offen offset:{u*64}{cfg.X2_FLAGS}")
            if u == 2 and n < 17:
                I("s_add_u32 s45, s45, 12288")
        XR = lambda n: 16 + 4 * n
        nst = 0
        def conv_store(j):
            for u in range(3):
                n = 3 * j + u
                a0, a1 = ACC(2 * u, j), ACC(2 * u + 1, j)
                I(f"v_cvt_pk_bf16_f32 v{XR(n)}, v{a0}, v{a0+1}")
                I(f"v_cvt_pk_bf16_f32 v{XR(n)+1}, v{a0+2}, v{a0+3}")
                I(f"v_cvt_pk_bf16_f32 v{XR(n)+2}, v{a1}, v{a1+1}")
                I(f"v_cvt_pk_bf16_f32 v{XR(n)+3}, v{a1+2}, v{a1+3}")
                I(f"buffer_store_dwordx4 {vr(XR(n))}, v{V_X}, s[16:19], s{S_XOFF} offen offset:{u*64}{cfg.OUT_FLAGS}")
            I(f"s_add_u32 s{S_XOFF}, s{S_XOFF}, 12288")
            bias_init([j])
        for j in range(6):
            younger = (17 - (3 * j + 2)) + (NLD if j < 4 else 0) + nst
            I(f"s_waitcnt vmcnt({younger})")
            for u in range(3):
                n = 3 * j + u
                I(f"v_mfma_f32_16x16x32_bf16 {vr(ACC(2*u,j))}, {vr(V_SEL+2)}, {vr(XR(n))}, {vr(ACC(2*u,j))}")
                I(f"v_mfma_f32_16x16x32_bf16 {vr(ACC(2*u+1,j))}, {vr(V_SEL)}, {vr(XR(n))}, {vr(ACC(2*u+1,j))}")
            if j >= 1:
                I("s_nop 1")
                conv_store(j - 1); nst += 3
        I("s_nop 7")
        conv_store(5)
        I(f"s_add_u32 s{S_RND}, s{S_RND}, 1")
        I(f"s_sub_u32 s{S_TILE}, s{S_TILE}, 256")
        I(f"s_cmp_lt_u32 s{S_RND}, 3")
        I(f"s_cbranch_scc1 L_k2_{r}_tile")
        I("s_endpgm")
    role("W")
    E("L_k2_H:")
    role("H")
    E("L_k2_end:")
    I("s_endpgm")
    return K2_BIAS + C * 4

def descriptor(name, vgpr, sgpr=96):
    E(".p2align 6")
    E(f".amdhsa_kernel {name}")
    E(f"  .amdhsa_next_free_vgpr {vgpr}")
    E(f"  .amdhsa_next_free_sgpr {sgpr}")
    E(f"  .amdhsa_accum_offset {(vgpr+3)//4*4}")
    E("  .amdhsa_group_segment_fixed_size 0")
    E("  .amdhsa_kernarg_size 72")
    E("  .amdhsa_user_sgpr_count 2")
    E("  .amdhsa_user_sgpr_kernarg_segment_ptr 1")
    E("  .amdhsa_system_sgpr_workgroup_id_x 1")
    E(".end_amdhsa_kernel")

E('.amdgcn_target "amdgcn-amd-amdhsa--gfx950"')
E(".text")
gen_k0()
gen_k1()
gen_kmid()
k2_lds = gen_k2()
E('.section .rodata,"a"')
descriptor("prep_kernel", 48)
descriptor("ln_gemm1_kernel", 256)
descriptor("grn_kernel", 64 if cfg.NREP <= 8 else 96)
descriptor("gemm2_kernel", 256)

hdr = f"""; SLaK / ConvNeXt-v2 style block, K=1 depthwise: out = x + GRN(gelu(LN(x*dw) @ w1)) @ w2
; @launch kernel=prep_kernel grid=(336,1,1) block=(256,1,1) lds=0
; @launch kernel=ln_gemm1_kernel grid=({NT},1,1) block=(256,1,1) lds={K1_LDS}
; @launch kernel=grn_kernel grid=(145,1,1) block=(512,1,1) lds=8192
; @launch kernel=gemm2_kernel grid=(256,1,1) block=(512,1,1) lds={k2_lds}
"""
open(sys.argv[1], "w").write(hdr + "\n".join(out) + "\n")
```

```python
import math, struct, sys

def f32(x):
    return "0x%08x" % struct.unpack("<I", struct.pack("<f", x))[0]

M = 147456; C = 384; H = 1536
TILE = 192; NT = M // TILE
NCH = 48
X_BYTES = M * C * 2
WS_BYTES = 452984832
K0c = 2.0 * math.sqrt(2.0 / math.pi)
LOG2E = 1.4426950408889634
C0 = K0c * LOG2E
C1 = K0c * 0.044715 * LOG2E
GAMMA = C1 ** (1.0 / 3.0)
CC = C0 / GAMMA

class Cfg:
    NC_OUT = 12
    NREP = 8
    H_STORE_FLAGS = " nt"
    H_LOAD_FLAGS = " nt"
    X1_FLAGS = " nt"
    X1A_FLAGS = " nt"
    X1B_FLAGS = " nt"
    X2_FLAGS = " nt"
    OUT_FLAGS = " nt"
    K1_IDLE = 3
    K2_RDPOS = 10
    ABL = ''
cfg = Cfg()
for a in sys.argv[2:]:
    k, v = a.split("=", 1)
    cur = getattr(cfg, k)
    setattr(cfg, k, int(v) if isinstance(cur, int) else ((" " + v.replace(",", " ")) if v else ""))

NCW = NCH - cfg.NC_OUT
H_WS_BYTES = NT * NCW * 12288
WF_BYTES = C * H * 2
OFF_W1F = H_WS_BYTES
OFF_W2S = OFF_W1F + WF_BYTES
OFF_SUM = OFF_W2S + WF_BYTES
OFF_BP = OFF_SUM + cfg.NREP * H * 4
OFF_BIAS = OFF_BP + 48 * C * 4
assert OFF_BIAS + C * 4 <= WS_BYTES

out = []
def E(s=""):
    out.append(s)
def I(s):
    out.append("    " + s)

def srd(d, base, nbytes, off=0):
    if off:
        I(f"s_add_u32 s{d}, s{base}, {off:#x}")
        I(f"s_addc_u32 s{d+1}, s{base+1}, 0")
        I(f"s_and_b32 s{d+1}, s{d+1}, 0xffff")
    else:
        I(f"s_mov_b32 s{d}, s{base}")
        I(f"s_and_b32 s{d+1}, s{base+1}, 0xffff")
    I(f"s_mov_b32 s{d+2}, {nbytes:#x}")
    I(f"s_mov_b32 s{d+3}, 0x20000")

def head(name):
    E(f".globl {name}")
    E(".p2align 8")
    E(f".type {name},@function")
    E(f"{name}:")

def vr(a, n=4):
    return f"v[{a}:{a+n-1}]"

def interleave(slots, fill, lead=0):
    n = len(slots); k = 0
    for i, s in enumerate(slots):
        for x in s: I(x)
        tgt = min(len(fill), ((i + 1) * len(fill) + n - 1) // n + lead)
        while k < tgt:
            I(fill[k]); k += 1
    while k < len(fill):
        I(fill[k]); k += 1


def stamp(n):
    if 'prof' not in cfg.ABL: return
    I(f"s_memtime s[{84+4*n}:{85+4*n}]")
    I(f"s_memrealtime s[{86+4*n}:{87+4*n}]")
    I("s_waitcnt lgkmcnt(0)")
def stamp_out(wavereg, wgs, tag):
    if 'prof' not in cfg.ABL: return
    for k, wg in enumerate(wgs):
        for kk, wv in enumerate((0, 3)):
            lab = f"L_prof_{tag}_{k}_{kk}"
            I(f"s_cmp_eq_u32 s2, {wg}")
            I(f"s_cbranch_scc0 {lab}")
            I(f"s_and_b32 s60, s{wavereg}, 3")
            I(f"s_cmp_eq_u32 s60, {wv}")
            I(f"s_cbranch_scc0 {lab}")
            srd(56, 78, 256)
            I("s_sub_u32 s60, s88, s84"); I("v_mov_b32 v20, s60")
            I("s_sub_u32 s60, s90, s86"); I("v_mov_b32 v21, s60")
            I("s_sub_u32 s60, s92, s84"); I("v_mov_b32 v22, s60")
            I("s_sub_u32 s60, s94, s86"); I("v_mov_b32 v23, s60")
            I(f"s_lshr_b32 s60, s{wavereg}, 2")
            I("s_lshl_b32 s60, s60, 6")
            I("v_mov_b32 v24, 0")
            I(f"buffer_store_dwordx4 v[20:23], v24, s[56:59], s60 offen offset:{(k*2+kk)*16}")
            E(lab + ":")

def load_args():
    I("s_load_dwordx16 s[64:79], s[0:1], 0")
    I("s_load_dwordx2 s[80:81], s[0:1], 64")

def gen_k0():
    head("prep_kernel")
    I("s_cmp_ge_u32 s2, 336")
    I("s_cbranch_scc1 L_k0_end")
    load_args()
    I("s_cmp_ge_u32 s2, 288")
    I("s_cbranch_scc1 L_k0_bias")
    I("v_lshrrev_b32 v1, 6, v0")
    I("v_and_b32 v2, 15, v0")
    I("v_readfirstlane_b32 s3, v1")
    I("v_bfe_u32 v3, v0, 4, 2")
    I("s_lshl_b32 s4, s2, 2")
    I("s_add_u32 s4, s4, s3")
    I("s_mul_i32 s5, s4, 43691")
    I("s_lshr_b32 s5, s5, 19")
    I("s_mul_i32 s6, s5, 12")
    I("s_sub_u32 s6, s4, s6")
    I("s_mul_i32 s7, s6, %d" % (32 * 3072))
    I("s_lshl_b32 s5, s5, 5")
    I("s_add_u32 s7, s7, s5")
    I("v_mul_u32_u24 v4, %d, v3" % (8 * 3072))
    I("v_lshl_add_u32 v4, v2, 1, v4")
    I("s_waitcnt lgkmcnt(0)")
    srd(8, 68, WF_BYTES)
    srd(12, 80, WF_BYTES, OFF_W1F)
    for e in range(8):
        I(f"buffer_load_ushort v{8+e}, v4, s[8:11], s7 offen")
        if e < 7:
            I("s_add_u32 s7, s7, 3072")
    I("v_and_b32 v5, 63, v0")
    I("v_lshlrev_b32 v5, 4, v5")
    I("s_lshl_b32 s4, s4, 10")
    I("s_waitcnt vmcnt(0)")
    for i in range(4):
        I(f"v_lshl_or_b32 v{16+i}, v{9+2*i}, 16, v{8+2*i}")
    I("buffer_store_dwordx4 v[16:19], v5, s[12:15], s4 offen")
    I("s_endpgm")
    E("L_k0_bias:")
    I("s_sub_u32 s3, s2, 288")
    I("s_waitcnt lgkmcnt(0)")
    srd(8, 70, WF_BYTES)
    srd(12, 80, cfg.NREP * H * 4, OFF_SUM)
    srd(16, 80, 48 * C * 4, OFF_BP)
    I("s_lshl_b32 s4, s3, 6")
    I("s_add_u32 s20, s74, s4")
    I("s_addc_u32 s21, s75, 0")
    I("s_load_dwordx16 s[32:47], s[20:21], 0")
    per = cfg.NREP * H * 4 // 48
    assert per % 1024 == 0
    I("v_lshlrev_b32 v1, 2, v0")
    I("v_mov_b32 v2, 0")
    I(f"s_mul_i32 s5, s3, {per}")
    for i in range(per // 1024):
        I(f"buffer_store_dword v2, v1, s[12:15], s5 offen offset:{i*1024}")
    I("v_cmp_gt_u32 vcc, 192, v0")
    I("s_and_saveexec_b64 s[22:23], vcc")
    I("s_cbranch_execz L_k0_end")
    I("s_mul_i32 s6, s3, %d" % (32 * 768))
    for r in range(32):
        I(f"buffer_load_dword v{8+r}, v1, s[8:11], s6 offen offset:{(r%4)*768}")
        if r % 4 == 3 and r < 31:
            I("s_add_u32 s6, s6, 3072")
    I("v_mov_b32 v4, 0")
    I("v_mov_b32 v5, 0")
    I("s_waitcnt lgkmcnt(0)")
    for r in range(32):
        I(f"s_waitcnt vmcnt({31-r})")
        if r % 2 == 0:
            I(f"s_lshl_b32 s7, s{32+r//2}, 16")
        else:
            I(f"s_and_b32 s7, s{32+r//2}, 0xffff0000")
        I(f"v_lshlrev_b32 v6, 16, v{8+r}")
        I(f"v_and_b32 v7, 0xffff0000, v{8+r}")
        I("v_fmac_f32 v4, s7, v6")
        I("v_fmac_f32 v5, s7, v7")
    I("v_lshlrev_b32 v1, 3, v0")
    I("s_mul_i32 s6, s3, %d" % (C * 4))
    I("buffer_store_dwordx2 v[4:5], v1, s[16:19], s6 offen")
    E("L_k0_end:")
    I("s_endpgm")

K1_SLOT = 24576
K1_NS = 4
K1_SUM = K1_NS * K1_SLOT
K1_SCR = K1_SUM + 16384
K1_LDS = K1_SCR + 8 * 4096
def gen_k1():
    A = lambda j, s: 112 + (j * 12 + s) * 4
    ACC = lambda a, j: 88 + 12 * a + 4 * j
    BF = lambda b, i: 56 + 16 * b + 4 * i
    OUT = lambda j: 44 + 4 * j
    TMP = 32
    V_L16, V_RD, V_SW, V_ST, V_X, V_SB, V_AT = 1, 2, 3, 4, 5, 6, 7
    V_SQ = 8
    V_RED = 12
    (S_W, S_RDS, S_DMS, S_WOFF, S_HOFF, S_C, S_NEGC, S_T, S_EVT, S_P, S_TILE, S_TILE2, S_N2, S_WEND, S_W3, S_XW,
     S_SKIP, S_R, S_RC, S_WL, S_DB, S_G) = (3, 4, 5, 6, 7, 24, 25, 26, 32, 33, 34, 35, 36, 38, 39, 40, 42, 44, 45, 46, 47, 48)
    NM = cfg.K1_IDLE
    DELTA = NM + 3
    head("ln_gemm1_kernel")
    I("s_cmp_ge_u32 s2, 256")
    I("s_cbranch_scc1 L_k1_end")
    stamp(0)
    load_args()
    I("v_lshrrev_b32 v16, 6, v0")
    I("v_and_b32 v17, 63, v0")
    I(f"v_readfirstlane_b32 s{S_W}, v16")
    I("v_and_b32 v18, 15, v0")
    I("v_bfe_u32 v19, v0, 4, 2")
    I(f"v_lshlrev_b32 v{V_L16}, 4, v17")
    I(f"v_mul_u32_u24 v{V_X}, 768, v19")
    I(f"v_lshl_add_u32 v{V_X}, v18, 4, v{V_X}")
    I(f"s_and_b32 s{S_WL}, s{S_W}, 3")
    I(f"s_lshr_b32 s{S_G}, s{S_W}, 2")
    I("s_lshr_b32 s27, s2, 4")
    I("s_lshl_b32 s28, s27, 3")
    I("s_and_b32 s29, s2, 7")
    I("s_or_b32 s28, s28, s29")
    I("s_mul_i32 s29, s27, 3")
    I("s_lshr_b32 s29, s29, 1")
    if 'k1nostag' in cfg.ABL: I("s_mov_b32 s29, 0")
    I("s_bfe_u32 s30, s2, 0x10003")
    I("s_mul_i32 s30, s30, 24")
    I("s_add_u32 s49, s29, s30")
    I("s_add_u32 s29, s2, 384")
    I("s_add_u32 s30, s2, 128")
    I("s_add_u32 s31, s28, 640")
    I(f"s_add_u32 s27, s49, {DELTA}")
    I(f"s_cmp_eq_u32 s{S_G}, 0")
    I(f"s_cselect_b32 s{S_TILE}, s29, s31")
    I(f"s_cselect_b32 s{S_TILE2}, s28, s30")
    I(f"s_cselect_b32 s{S_P}, 48, 24")
    I(f"s_cselect_b32 s{S_N2}, 24, 48")
    I(f"s_cselect_b32 s{S_SKIP}, 1, 0")
    I(f"s_cselect_b32 s{S_C}, s49, s27")
    I(f"s_mul_i32 s{S_W3}, s{S_WL}, 3072")
    I(f"s_lshr_b32 s27, s{S_WL}, 1")
    I(f"s_mul_i32 s27, s27, {96*768}")
    I(f"s_and_b32 s28, s{S_WL}, 1")
    I(f"s_mul_i32 s28, s28, {12*768}")
    I(f"s_add_u32 s{S_XW}, s27, s28")
    I(f"s_mul_i32 s{S_DB}, s{S_W}, 3072")
    I(f"s_mov_b32 s{S_DMS}, s{S_DB}")
    I(f"s_add_u32 s{S_WEND}, s{S_DB}, {WF_BYTES}")
    I(f"s_mul_i32 s{S_WOFF}, s49, {K1_SLOT}")
    I(f"s_add_u32 s{S_WOFF}, s{S_WOFF}, s{S_DB}")
    I("s_waitcnt lgkmcnt(0)")
    srd(8, 64, X_BYTES)
    srd(28, 66, C * 2)
    srd(12, 80, WF_BYTES, OFF_W1F)
    def xloads(fl=None):
        fl = cfg.X1_FLAGS if fl is None else fl
        I(f"s_mul_i32 s{S_T}, s{S_TILE}, {TILE*768}")
        I(f"s_add_u32 s{S_T}, s{S_T}, s{S_XW}")
        I(f"v_and_b32 v10, 0xf0, v{V_L16}")
        for P in range(3):
            I(f"buffer_load_dwordx4 {vr(64+4*P)}, v10, s[28:31], 0 offen offset:{P*256}")
        for j in range(3):
            for n in range(4):
                I(f"s_add_u32 s27, s{S_T}, {j*3072 + n*18432}")
                for P in range(3):
                    I(f"buffer_load_dwordx4 {vr(A(j,4*P+n))}, v{V_X}, s[8:11], s27 offen offset:{P*256}{fl}")
    def piece(k):
        pre = [f"s_mov_b32 m0, s{S_DMS}"] if k == 0 else []
        ld = f"buffer_load_dwordx4 v{V_L16}, s[12:15], s{S_WOFF} offen offset:{k*1024} lds"
        post = []
        if k == 2:
            post = [f"s_add_u32 s{S_WOFF}, s{S_WOFF}, {K1_SLOT}",
                    f"s_cmp_ge_u32 s{S_WOFF}, s{S_WEND}",
                    f"s_cselect_b32 s{S_WOFF}, s{S_DB}, s{S_WOFF}",
                    f"s_add_u32 s{S_DMS}, s{S_DMS}, {K1_SLOT}",
                    f"s_cmp_ge_u32 s{S_DMS}, {K1_NS*K1_SLOT}",
                    f"s_cselect_b32 s{S_DMS}, s{S_DB}, s{S_DMS}"]
        return pre, ld, post
    def pieces(ks):
        for k in ks:
            pre, ld, post = piece(k)
            for o in pre: I(o)
            if pre: I("s_nop 0")
            I(ld)
            for o in post: I(o)
    adv_rds = [f"s_add_u32 s{S_RDS}, s{S_RDS}, {K1_SLOT}",
               f"s_cmp_ge_u32 s{S_RDS}, {K1_NS*K1_SLOT}",
               f"s_cselect_b32 s{S_RDS}, 0, s{S_RDS}"]
    def setup_rest():
        srd(16, 80, H_WS_BYTES)
        srd(20, 80, cfg.NREP * H * 4, OFF_SUM)
        I("s_and_b32 s37, s77, 0xffff")
        I("s_and_b32 s41, s81, 0xffff")
        I(f"s_lshl_b32 s27, s{S_G}, 13")
        I(f"s_add_u32 s27, s27, {K1_SUM}")
        I(f"v_lshl_add_u32 v{V_SB}, v17, 2, s27")
        I(f"v_and_b32 v{V_AT}, 31, v17")
        I(f"v_lshlrev_b32 v{V_AT}, 2, v{V_AT}")
        I("s_lshr_b32 s50, s2, 3")
        I(f"s_and_b32 s50, s50, {cfg.NREP-1}")
        I(f"s_mul_i32 s50, s50, {H*4}")
        I("v_lshrrev_b32 v20, 2, v18")
        I(f"v_lshlrev_b32 v{V_ST}, 8, v20")
        I(f"v_lshl_add_u32 v{V_ST}, v19, 6, v{V_ST}")
        I("v_and_b32 v20, 3, v18")
        I(f"v_lshl_add_u32 v{V_ST}, v20, 4, v{V_ST}")
        I(f"s_mov_b32 s{S_NEGC}, {f32(-CC)}")
        I(f"s_mov_b32 s{S_R}, 0")
    I(f"s_cmp_eq_u32 s{S_G}, 0")
    I("s_cbranch_scc0 L_k1_startB")
    xloads(cfg.X1A_FLAGS)
    pieces([0, 1, 2] * 3)
    setup_rest()
    I(f"s_mov_b32 s{S_RDS}, {(K1_NS-1)*K1_SLOT}")
    I("s_branch L_k1_ln")
    E("L_k1_startB:")
    pieces([0, 1, 2] * 4)
    xloads(cfg.X1B_FLAGS)
    setup_rest()
    I(f"s_mov_b32 s{S_RDS}, 0")
    I("s_waitcnt vmcnt(39)")
    I("s_barrier")
    def marker(vm, ks=(0, 1, 2)):
        I(f"s_waitcnt vmcnt({vm})")
        I("s_barrier")
        for o in adv_rds: I(o)
        pieces(ks)
    def reduce_group():
        I(f"s_sub_u32 s27, s{S_R}, 1")
        I("s_and_b32 s27, s27, 4")
        I("s_xor_b32 s27, s27, s51")
        I(f"s_add_u32 s27, s27, s{S_WL}")
        I("s_lshl_b32 s27, s27, 10")
        I(f"v_add_u32 v10, s27, v{V_SB}")
        for k in range(4):
            I(f"ds_read_b32 v{V_RED+k}, v10 offset:{k*256}")
        I(f"s_add_u32 s27, s{S_RC}, s{S_WL}")
        I(f"s_cmp_ge_u32 s27, {NCH}")
        I(f"s_cselect_b32 s43, {NCH}, 0")
        I("s_sub_u32 s27, s27, s43")
        I("s_lshl_b32 s27, s27, 7")
        I("s_add_u32 s27, s27, s50")
        I(f"s_add_u32 s{S_RC}, s{S_RC}, 4")
        I(f"s_cmp_ge_u32 s{S_RC}, {NCH}")
        I(f"s_cselect_b32 s43, {NCH}, 0")
        I(f"s_sub_u32 s{S_RC}, s{S_RC}, s43")
        I("s_waitcnt lgkmcnt(0)")
        I(f"v_add_f32 v{V_RED}, v{V_RED}, v{V_RED+1}")
        I(f"v_add_f32 v{V_RED+2}, v{V_RED+2}, v{V_RED+3}")
        I(f"v_add_f32 v{V_RED}, v{V_RED}, v{V_RED+2}")
        if 'k1noadd' not in cfg.ABL:
            I(f"buffer_atomic_add_f32 v{V_RED}, v{V_AT}, s[20:23], s27 offen")
    def hpos():
        I(f"s_cmp_ge_u32 s{S_C}, {NCH}")
        I(f"s_cselect_b32 s27, {NCH}, 0")
        I(f"s_sub_u32 s{S_C}, s{S_C}, s27")
        I(f"s_mul_i32 s27, s{S_TILE}, {NCW}")
        I(f"s_add_u32 s27, s27, s{S_C}")
        I(f"s_mul_i32 s43, s{S_TILE}, 12")
        I(f"s_add_u32 s43, s43, s{S_C}")
        I(f"s_sub_u32 s43, s43, {NCW}")
        I(f"s_cmp_lt_u32 s{S_C}, {NCW}")
        I("s_cselect_b32 s27, s27, s43")
        I("s_cselect_b32 s16, s80, s76")
        I("s_cselect_b32 s17, s41, s37")
        I(f"s_cselect_b32 s{S_EVT}, {NCW}, {NCH}")
        I(f"s_mov_b32 s18, {X_BYTES:#x}")
        I(f"s_cselect_b32 s18, {H_WS_BYTES:#x}, s18")
        I(f"s_mul_i32 s{S_HOFF}, s27, 12288")
        I(f"s_add_u32 s{S_HOFF}, s{S_HOFF}, s{S_W3}")
    E("L_k1_phase:")
    for m in range(NM):
        marker(51 - 3 * m if m < 3 else 6)
        if m == 0:
            I(f"s_cmp_eq_u32 s{S_R}, 0")
            I("s_cbranch_scc1 L_k1_nored")
            I("s_mov_b32 s51, 0")
            reduce_group()
            I(f"s_mov_b32 s{S_R}, 0")
            E("L_k1_nored:")
    E("L_k1_ln:")
    hpos()
    I(f"s_mov_b32 s{S_RC}, s{S_C}")
    I("s_mov_b32 s51, 4")
    DW = 16; ST = 40; AW = 56; AR = 60; T0 = 64
    I(f"v_lshrrev_b32 v48, 4, v{V_L16}")
    I("v_and_b32 v49, 15, v48")
    I("v_lshrrev_b32 v50, 4, v48")
    I("v_xor_b32 v51, v49, v50")
    I("v_lshlrev_b32 v51, 4, v51")
    I(f"s_lshl_b32 s27, s{S_W}, 12")
    I(f"s_add_u32 s27, s27, {K1_SCR}")
    I("v_lshl_add_u32 v52, v50, 8, v51")
    I("v_lshl_add_u32 v53, v49, 8, v51")
    for n in range(4):
        I(f"v_xor_b32 v{AW+n}, {n<<6}, v52")
        I(f"v_xor_b32 v{AR+n}, {n<<6}, v53")
    for n in range(4):
        I(f"v_add_u32 v{AW+n}, s27, v{AW+n}")
        I(f"v_add_u32 v{AR+n}, s27, v{AR+n}")
    yp = min(9, 3 * NM)
    I(f"s_waitcnt vmcnt({36+yp})")
    for P in range(3):
        for i in range(4):
            I(f"v_lshlrev_b32 v{DW+8*P+2*i}, 16, v{64+4*P+i}")
            I(f"v_and_b32 v{DW+8*P+2*i+1}, 0xffff0000, v{64+4*P+i}")
    for j in range(3):
        if j > 0:
            I(f"s_cmp_eq_u32 s{S_SKIP}, 1")
            I(f"s_cbranch_scc1 L_k1_sk{j}")
            m = NM + j - 1
            marker(51 - 3 * m if m < 3 else 6)
            E(f"L_k1_sk{j}:")
        I(f"s_waitcnt vmcnt({12*(2-j)+yp})")
        for P in range(3):
            for n in range(4):
                R = [A(j, 4*P+n) + i for i in range(4)]
                T = [T0 + 4 * (4*P+n) + i for i in range(4)]
                d = DW + 8 * P
                for i in range(4): I(f"v_lshlrev_b32 v{T[i]}, 16, v{R[i]}")
                for i in range(4): I(f"v_and_b32 v{R[i]}, 0xffff0000, v{R[i]}")
                for i in range(4): I(f"v_mul_f32 v{T[i]}, v{T[i]}, v{d+2*i}")
                for i in range(4): I(f"v_mul_f32 v{R[i]}, v{R[i]}, v{d+2*i+1}")
                su, sq = ST + n, ST + 4 + n
                for i in range(4):
                    if P == 0 and i == 0:
                        I(f"v_add_f32 v{su}, v{T[i]}, v{R[i]}")
                        I(f"v_mul_f32 v{sq}, v{T[i]}, v{T[i]}")
                    else:
                        I(f"v_add_f32 v{su}, v{su}, v{T[i]}")
                        I(f"v_fmac_f32 v{sq}, v{T[i]}, v{T[i]}")
                        I(f"v_add_f32 v{su}, v{su}, v{R[i]}")
                    I(f"v_fmac_f32 v{sq}, v{R[i]}, v{R[i]}")
        I("s_nop 1")
        for ror in (8, 4, 2, 1):
            for k in range(8):
                I(f"v_add_f32_dpp v{ST+k}, v{ST+k}, v{ST+k} row_ror:{ror} row_mask:0xf bank_mask:0xf")
        for k in range(8): I(f"v_mul_f32 v{ST+k}, {f32(1.0/C)}, v{ST+k}")
        for n in range(4): I(f"v_fma_f32 v{ST+4+n}, -v{ST+n}, v{ST+n}, v{ST+4+n}")
        for n in range(4): I(f"v_max_f32 v{ST+4+n}, 0, v{ST+4+n}")
        for n in range(4): I(f"v_add_f32 v{ST+4+n}, {f32(1e-5)}, v{ST+4+n}")
        for n in range(4): I(f"v_rsq_f32 v{ST+4+n}, v{ST+4+n}")
        for n in range(4): I(f"v_mul_f32 v{ST+4+n}, {f32(GAMMA)}, v{ST+4+n}")
        for n in range(4): I(f"v_mul_f32 v{ST+n}, v{ST+n}, v{ST+4+n}")
        for P in range(3):
            for n in range(4):
                R = [A(j, 4*P+n) + i for i in range(4)]
                T = [T0 + 4 * (4*P+n) + i for i in range(4)]
                for i in range(4): I(f"v_fma_f32 v{T[i]}, v{T[i]}, v{ST+4+n}, -v{ST+n}")
                for i in range(4): I(f"v_fma_f32 v{R[i]}, v{R[i]}, v{ST+4+n}, -v{ST+n}")
                for i in range(4): I(f"v_cvt_pk_bf16_f32 v{R[i]}, v{T[i]}, v{R[i]}")
                I(f"ds_write_b128 v{AW+n}, {vr(R[0])} offset:{n*1024}")
            for n in range(4):
                I(f"ds_read_b128 {vr(A(j, 4*P+n))}, v{AR+n}")
    def gelu(a, t, store):
        ops = []
        for j in range(3):
            z = [ACC(a, j) + r for r in range(4)]
            tt = [TMP + 4 * j + r for r in range(4)]
            ops += [f"v_fma_f32 v{tt[r]}, -v{z[r]}, v{z[r]}, s{S_NEGC}" for r in range(4)]
            ops += [f"v_mul_f32 v{tt[r]}, v{z[r]}, v{tt[r]}" for r in range(4)]
            ops += [f"v_exp_f32 v{tt[r]}, v{tt[r]}" for r in range(4)]
            ops += [f"v_add_f32 v{tt[r]}, 1.0, v{tt[r]}" for r in range(4)]
            ops += [f"v_rcp_f32 v{tt[r]}, v{tt[r]}" for r in range(4)]
            ops += [f"v_mul_f32 v{tt[r]}, v{z[r]}, v{tt[r]}" for r in range(4)]
            sq = []
            for r in range(4):
                if j == 0 and r == 0:
                    sq.append(f"v_mul_f32 v{V_SQ+t}, v{tt[r]}, v{tt[r]}")
                else:
                    sq.append(f"v_fmac_f32 v{V_SQ+t}, v{tt[r]}, v{tt[r]}")
            cv = [f"v_cvt_pk_bf16_f32 v{OUT(j)+2*t}, v{tt[0]}, v{tt[1]}",
                  f"v_cvt_pk_bf16_f32 v{OUT(j)+2*t+1}, v{tt[2]}, v{tt[3]}"]
            ops += sq + cv
            if store and j == 2:
                ops.append(f"v_permlane16_swap_b32 v{V_SQ}, v{V_SQ+1}")
            if store and 'k1nostore' not in cfg.ABL:
                ops.append(f"buffer_store_dwordx4 {vr(OUT(j))}, v{V_ST}, s[16:19], s{S_HOFF} offen offset:{j*1024}{cfg.H_STORE_FLAGS}")
        if store:
            ops.append(f"v_add_f32 v{V_SQ+1}, v{V_SQ}, v{V_SQ+1}")
            ops.append(f"ds_write_b32 v{V_SW}, v{V_SQ+1}")
        if 'k1nosw' in cfg.ABL: ops = [o for o in ops if 'permlane' not in o and 'ds_write' not in o]
        if 'k1e64' in cfg.ABL:
            ops = [(o.replace('_f32 ', '_f32_e64 ', 1) if o.split()[0] in ('v_mul_f32', 'v_exp_f32', 'v_add_f32', 'v_rcp_f32', 'v_fmac_f32') else o) for o in ops]
        return ops
    def reads(G):
        return [f"ds_read_b128 {vr(BF(G%2, i))}, v{V_RD} offset:{(G*4+i)*1024}" for i in range(4)]
    sw_addr = [f"s_and_b32 s27, s{S_R}, 7", "s_lshl_b32 s27, s27, 2", f"s_add_u32 s27, s27, s{S_WL}", "s_lshl_b32 s27, s27, 8",
               f"v_add_u32 v{V_SW}, s27, v{V_SB}"]
    def half(t, fill):
        slots = []
        for g in range(3):
            G = 3 * t + g
            has_d = G % 2 == 1
            pre_d, ld_d, post_d = piece(((G + 1) // 2) % 3)
            if 'k1nodma' in cfg.ABL: ld_d = "s_nop 0"
            for j in range(3):
                for i in range(4):
                    pre = []
                    if j == 0 and i == 0:
                        if G == 5:
                            pre.append("s_waitcnt vmcnt(12) lgkmcnt(0)" if 'k1novm' not in cfg.ABL else "s_waitcnt lgkmcnt(0)")
                            pre.append("s_barrier")
                            pre.append(f"v_add_u32 v{V_RD}, s{S_RDS}, v{V_L16}")
                        else:
                            pre.append("s_waitcnt lgkmcnt(0)")
                    s = 4 * g + i
                    c = "0" if s == 0 else vr(ACC(t, j))
                    sl = pre + [f"v_mfma_f32_16x16x32_bf16 {vr(ACC(t,j))}, {vr(A(j,s))}, {vr(BF(G%2,i))}, {c}"]
                    if j == 0:
                        sl.append(reads((G + 1) % 6)[i])
                    if has_d:
                        if j == 1 and i == 0: sl += pre_d
                        if j == 1 and i == 1: sl.append(ld_d)
                        if j == 1 and i == 2: sl += post_d[:3]
                        if j == 1 and i == 3: sl += post_d[3:]
                    if G == 4 and j == 1 and i == 1: sl += adv_rds
                    if G == 4 and j == 2 and i == 1: sl += sw_addr
                    if 'k1nosalu' in cfg.ABL: sl = [o for o in sl if not (o.startswith('s_') and not o.startswith('s_wait') and not o.startswith('s_barrier'))]
                    slots.append(sl)
        interleave(slots, fill)
    stamp(1)
    I("s_waitcnt lgkmcnt(0)")
    marker(0, ks=(0,))
    I(f"s_mov_b32 s{S_SKIP}, 0")
    I(f"v_add_u32 v{V_RD}, s{S_RDS}, v{V_L16}")
    for o in reads(0): I(o)
    half(0, [])
    I("s_branch L_k1_mid")
    E("L_k1_evt:")
    hpos()
    I("s_branch L_k1_chk")
    E("L_k1_red:")
    I(f"s_cmp_lt_u32 s{S_R}, 5")
    I("s_cbranch_scc1 L_k1_mid")
    reduce_group()
    I("s_branch L_k1_mid")
    E(".p2align 6")
    E("L_k1_loop:")
    half(0, gelu(1, 1, True))
    I(f"s_add_u32 s{S_HOFF}, s{S_HOFF}, 12288")
    I(f"s_add_u32 s{S_R}, s{S_R}, 1")
    I(f"s_add_u32 s{S_C}, s{S_C}, 1")
    I(f"s_cmp_eq_u32 s{S_C}, s{S_EVT}")
    I("s_cbranch_scc1 L_k1_evt")
    E("L_k1_chk:")
    I(f"s_and_b32 s27, s{S_R}, 3")
    I("s_cmp_eq_u32 s27, 1")
    if 'k1nored' not in cfg.ABL: I("s_cbranch_scc1 L_k1_red")
    E("L_k1_mid:")
    half(1, gelu(0, 0, False))
    I(f"s_sub_u32 s{S_P}, s{S_P}, 1")
    I(f"s_cmp_lg_u32 s{S_P}, 0")
    I("s_cbranch_scc1 L_k1_loop")
    I("s_nop 7")
    for o in gelu(1, 1, True):
        if 'permlane' in o: I("s_nop 1")
        I(o)
    pieces([1, 2])
    I(f"s_add_u32 s{S_R}, s{S_R}, 1")
    I("s_waitcnt lgkmcnt(0)")
    I(f"s_cmp_eq_u32 s{S_N2}, 0")
    I("s_cbranch_scc1 L_k1_fin")
    I(f"s_add_u32 s{S_C}, s{S_C}, {1+DELTA}")
    I(f"s_mov_b32 s{S_TILE}, s{S_TILE2}")
    I(f"s_mov_b32 s{S_P}, s{S_N2}")
    I(f"s_mov_b32 s{S_N2}, 0")
    xloads()
    I("s_branch L_k1_phase")
    E("L_k1_fin:")
    marker(12)
    I("s_mov_b32 s51, 0")
    reduce_group()
    I(f"s_cmp_eq_u32 s{S_G}, 0")
    I("s_cbranch_scc0 L_k1_done")
    for m in range(1, DELTA - K1_NS):
        marker(6)
    E("L_k1_done:")
    I("s_waitcnt vmcnt(0)")
    stamp(2)
    stamp_out(S_W, (5, 200), "k1")
    E("L_k1_end:")
    I("s_endpgm")

def gen_kmid():
    head("grn_kernel")
    I("s_cmp_gt_u32 s2, 144")
    I("s_cbranch_scc1 L_km_end")
    load_args()
    I("s_cmp_eq_u32 s2, 144")
    I("s_cbranch_scc1 L_km_bias")
    I("v_lshrrev_b32 v1, 6, v0")
    I("v_and_b32 v2, 15, v0")
    I("v_readfirstlane_b32 s3, v1")
    I("v_bfe_u32 v3, v0, 4, 2")
    I("s_mul_i32 s4, s2, 43691")
    I("s_lshr_b32 s4, s4, 17")
    I("s_mul_i32 s5, s4, 3")
    I("s_sub_u32 s5, s2, s5")
    I("s_lshl_b32 s5, s5, 3")
    I("s_add_u32 s5, s5, s3")
    I("s_mul_i32 s6, s5, 43")
    I("s_lshr_b32 s6, s6, 8")
    I("s_mul_i32 s6, s6, 90")
    I("s_add_u32 s6, s6, s5")
    I("v_mul_u32_u24 v4, 6, v2")
    I("v_add_u32 v4, s6, v4")
    I("v_and_b32 v5, 1, v3")
    I("v_lshlrev_b32 v5, 4, v5")
    I("v_lshrrev_b32 v6, 1, v3")
    I("v_lshl_add_u32 v5, v6, 2, v5")
    I("v_mul_u32_u24 v6, 768, v5")
    I("v_lshl_add_u32 v6, v4, 1, v6")
    I("s_mul_i32 s7, s4, %d" % (32 * 768))
    I("s_waitcnt lgkmcnt(0)")
    srd(8, 70, WF_BYTES)
    srd(12, 80, cfg.NREP * H * 4, OFF_SUM)
    srd(16, 80, WF_BYTES, OFF_W2S)
    srd(20, 72, H * 2)
    I("v_lshlrev_b32 v7, 2, v0")
    I("s_mov_b32 s24, 0")
    for r in range(cfg.NREP):
        for a in range(3):
            if a == 2:
                I("s_add_u32 s24, s24, 4096")
            I(f"buffer_load_dword v{32 + r*3 + a}, v7, s[12:15], s24 offen offset:{(a%2)*2048}")
        I("s_add_u32 s24, s24, 2048")
    I("s_add_u32 s25, s7, %d" % (8 * 768))
    for e in range(8):
        I(f"buffer_load_ushort v{8+e}, v6, s[8:11], s{7 if e < 4 else 25} offen offset:{(e%4)*768}")
    I("v_and_b32 v16, 31, v0")
    I("v_lshlrev_b32 v17, 1, v16")
    I("s_lshl_b32 s26, s4, 6")
    I("buffer_load_ushort v18, v17, s[20:23], s26 offen")
    I("s_waitcnt vmcnt(9)")
    for a in range(3):
        for r in range(1, cfg.NREP):
            I(f"v_add_f32 v{32+a}, v{32+a}, v{32+r*3+a}")
    I(f"s_mov_b32 s27, {f32(1.0/(GAMMA*GAMMA))}")
    I(f"v_mov_b32 v19, {f32(1e-6)}")
    for a in range(3):
        I(f"v_fma_f32 v{32+a}, v{32+a}, s27, v19")
    for a in range(3):
        I(f"v_sqrt_f32 v{32+a}, v{32+a}")
    I("s_nop 0")
    for a in range(3):
        I(f"ds_write_b32 v7, v{32+a} offset:{a*2048}")
    I("v_add_f32 v20, v32, v33")
    I("v_add_f32 v20, v20, v34")
    for ror in (8, 4, 2, 1):
        I("s_nop 1")
        I(f"v_add_f32_dpp v20, v20, v20 row_ror:{ror} row_mask:0xf bank_mask:0xf")
    for sw in ("v_permlane16_swap_b32", "v_permlane32_swap_b32"):
        I("v_mov_b32 v21, v20")
        I("s_nop 1")
        I(f"{sw} v20, v21")
        I("s_nop 1")
        I("v_add_f32 v20, v20, v21")
    I("v_lshlrev_b32 v21, 2, v1")
    I("ds_write_b32 v21, v20 offset:6144")
    I("s_waitcnt lgkmcnt(0)")
    I("s_barrier")
    I("v_mov_b32 v21, 0")
    I("ds_read_b128 v[24:27], v21 offset:6144")
    I("ds_read_b128 v[28:31], v21 offset:6160")
    I("s_lshl_b32 s26, s4, 7")
    I("v_lshl_add_u32 v22, v16, 2, s26")
    I("ds_read_b32 v23, v22")
    I("s_waitcnt lgkmcnt(0)")
    for i in range(1, 8):
        I(f"v_add_f32 v24, v24, v{24+i}")
    I(f"v_mov_b32 v25, {f32(1.0/H)}")
    I("v_fma_f32 v24, v24, v25, v19")
    I("v_rcp_f32 v24, v24")
    I("s_waitcnt vmcnt(0)")
    I("v_lshlrev_b32 v18, 16, v18")
    I("v_mul_f32 v23, v23, v24")
    I("v_fma_f32 v23, v23, v18, 1.0")
    I(f"v_mul_f32 v23, {f32(1.0/GAMMA)}, v23")
    I("v_lshlrev_b32 v21, 7, v1")
    I("v_lshl_add_u32 v22, v16, 2, v21")
    I("ds_write_b32 v22, v23 offset:6400")
    I("v_lshl_add_u32 v22, v5, 2, v21")
    I("s_waitcnt lgkmcnt(0)")
    I("ds_read_b128 v[24:27], v22 offset:6400")
    I("ds_read_b128 v[28:31], v22 offset:6432")
    for e in range(8):
        I(f"v_lshlrev_b32 v{8+e}, 16, v{8+e}")
    I("s_waitcnt lgkmcnt(0)")
    for e in range(8):
        I(f"v_mul_f32 v{8+e}, v{8+e}, v{24+e}")
    for i in range(4):
        I(f"v_cvt_pk_bf16_f32 v{24+i}, v{8+2*i}, v{9+2*i}")
    I("v_and_b32 v21, 63, v0")
    I("v_lshlrev_b32 v21, 4, v21")
    I("s_mul_i32 s26, s4, 24")
    I("s_add_u32 s26, s26, s5")
    I("s_lshl_b32 s26, s26, 10")
    I("buffer_store_dwordx4 v[24:27], v21, s[16:19], s26 offen")
    I("s_endpgm")
    E("L_km_bias:")
    I("s_waitcnt lgkmcnt(0)")
    srd(8, 80, 48 * C * 4, OFF_BP)
    srd(12, 80, C * 4, OFF_BIAS)
    I("v_cmp_gt_u32 vcc, 384, v0")
    I("s_and_saveexec_b64 s[22:23], vcc")
    I("s_cbranch_execz L_km_end")
    I("v_lshlrev_b32 v1, 2, v0")
    I("s_mov_b32 s4, 0")
    for g in range(48):
        I(f"buffer_load_dword v{8+g}, v1, s[8:11], s4 offen offset:{(g%2)*1536}")
        if g % 2 == 1:
            I("s_add_u32 s4, s4, 3072")
    for g in range(1, 48):
        I(f"s_waitcnt vmcnt({47-g})")
        I(f"v_add_f32 v8, v8, v{8+g}")
    I("v_lshlrev_b32 v2, 2, v0")
    I("buffer_store_dword v8, v2, s[12:15], 0 offen")
    E("L_km_end:")
    I("s_endpgm")

K2_WSLOT = 24576
K2_HBASE = 4 * K2_WSLOT
K2_HSLOT = 12288
K2_XBASE = K2_HBASE + 4 * K2_HSLOT
K2_XSLOT = 3072
K2_LDS = K2_XBASE + 4 * K2_XSLOT
def gen_k2():
    assert NCW % 4 == 0 and 8 <= NCW <= 44
    ACC = lambda t, j: 112 + 24 * t + 4 * j
    HF = lambda b, j: 64 + 24 * b + 4 * j
    WF = lambda b, t: 32 + 4 * t if t < 4 else 48 + 8 * b + 4 * (t - 4)
    V_L16, V_W0, V_W1, V_H, V_XB, V_ST, V_BI, V_XRAW, V_TMP = 1, 2, 3, 4, 6, 7, 8, 16, 20
    S_W, S_WO, S_WO2, S_XO, S_HO, S_U, S_TILE, S_SO, S_RND, S_BODY = 3, 4, 5, 6, 7, 25, 26, 27, 28, 29
    head("gemm2_kernel")
    I("s_cmp_ge_u32 s2, 256")
    I("s_cbranch_scc1 L_k2_end")
    stamp(0)
    load_args()
    I("v_lshrrev_b32 v24, 6, v0")
    I("v_and_b32 v25, 63, v0")
    I(f"v_readfirstlane_b32 s{S_W}, v24")
    I(f"v_lshlrev_b32 v{V_L16}, 4, v25")
    I("v_and_b32 v26, 15, v0")
    I("v_bfe_u32 v27, v0, 4, 2")
    I(f"s_and_b32 s30, s{S_W}, 3")
    I(f"s_lshr_b32 s31, s{S_W}, 2")
    I("s_mul_i32 s32, s30, 6144")
    I(f"v_add_u32 v{V_W0}, s32, v{V_L16}")
    I(f"v_add_u32 v{V_W1}, {2*K2_WSLOT}, v{V_W0}")
    I("v_lshrrev_b32 v28, 1, v27")
    I(f"v_lshlrev_b32 v{V_H}, 8, v28")
    I("v_and_b32 v28, 3, v26")
    I(f"v_lshl_add_u32 v{V_H}, v28, 6, v{V_H}")
    I("v_lshrrev_b32 v28, 2, v26")
    I(f"v_lshl_add_u32 v{V_H}, v28, 4, v{V_H}")
    I("v_and_b32 v28, 1, v27")
    I(f"v_lshl_add_u32 v{V_H}, v28, 3, v{V_H}")
    I("s_mul_i32 s33, s31, 6144")
    I(f"s_add_u32 s33, s33, {K2_HBASE}")
    I(f"v_add_u32 v{V_H}, s33, v{V_H}")
    I("v_mul_u32_u24 v28, 12, v26")
    I("s_mul_i32 s35, s30, 192")
    I(f"s_add_u32 s33, s35, {K2_XBASE}")
    I(f"v_mul_u32_u24 v{V_XB}, 768, v27")
    I(f"v_add3_u32 v{V_XB}, v{V_XB}, v28, s33")
    I(f"v_mul_u32_u24 v{V_ST}, 18432, v27")
    I(f"v_add_u32 v{V_ST}, v{V_ST}, v28")
    I(f"s_mul_i32 s34, s31, {96*768}")
    I("s_add_u32 s34, s34, s35")
    I("s_add_u32 s36, s32, 4096")
    I(f"s_mov_b32 s{S_WO}, s32")
    I(f"s_mov_b32 s{S_WO2}, s36")
    I(f"s_mov_b32 s{S_TILE}, s2")
    I(f"s_mov_b32 s{S_RND}, 0")
    I("s_waitcnt lgkmcnt(0)")
    srd(16, 76, X_BYTES)
    srd(20, 80, C * 4, OFF_BIAS)
    srd(52, 80, WF_BYTES, OFF_W2S)
    I("v_lshlrev_b32 v28, 1, v28")
    I("s_lshl_b32 s33, s35, 1")
    I(f"buffer_load_dwordx4 {vr(V_BI)}, v28, s[20:23], s33 offen")
    I(f"buffer_load_dwordx2 {vr(V_BI+4,2)}, v28, s[20:23], s33 offen offset:16")
    I("s_cmp_eq_u32 s31, 0")
    I("s_cbranch_scc0 L_k2_H")
    VM = 10
    POS = [1, 3, 5, 7, 9]

    def role(r):
        mg = 0 if r == "W" else 1
        if r == "W":
            def dma(n, var):
                ops = []
                slot = n % 4
                if var == "last" and n == 0:
                    ops.append((0, [f"s_mov_b32 s{S_WO}, s32", f"s_mov_b32 s{S_WO2}, s36"]))
                ops.append((POS[0] - 1, [f"s_add_u32 m0, s32, {slot*K2_WSLOT}"]))
                for k in range(4):
                    ops.append((POS[k], [f"buffer_load_dwordx4 v{V_L16}, s[52:55], s{S_WO} offen offset:{k*1024} lds"]))
                ops.append((POS[4] - 1, [f"s_add_u32 m0, s36, {slot*K2_WSLOT}"]))
                ops.append((POS[4], [f"buffer_load_dwordx4 v{V_L16}, s[52:55], s{S_WO2} offen lds"]))
                ops.append((15, [f"s_add_u32 s{S_WO}, s{S_WO}, {K2_WSLOT}"]))
                ops.append((16, [f"s_add_u32 s{S_WO2}, s{S_WO2}, {K2_WSLOT}"]))
                return ops
        else:
            srd(8, 80, H_WS_BYTES)
            srd(12, 64, X_BYTES if 'k2nox' not in cfg.ABL else 0)
            I("s_and_b32 s37, s77, 0xffff")
            I("s_and_b32 s38, s81, 0xffff")
            I("s_mul_i32 s40, s30, 3072")
            I(f"s_add_u32 s41, s40, {K2_HBASE}")
            I("s_mul_i32 s42, s30, 18432")
            I("s_mul_i32 s43, s30, 768")
            I(f"s_add_u32 s43, s43, {K2_XBASE}")
            I(f"s_mul_i32 s{S_HO}, s{S_TILE}, {NCW*12288}")
            I(f"s_add_u32 s{S_HO}, s{S_HO}, s40")
            I(f"s_mul_i32 s{S_XO}, s{S_TILE}, {TILE*768}")
            I(f"s_add_u32 s{S_XO}, s{S_XO}, s42")
            I("s_mov_b32 s48, -1")
            I("s_mov_b32 s49, 0xffff")
            def dma(n, var):
                ops = []
                slot = n % 4
                ops.append((POS[0] - 1, [f"s_add_u32 m0, s41, {slot*K2_HSLOT}"]))
                for k in range(3):
                    ops.append((POS[k], [f"buffer_load_dwordx4 v{V_L16}, s[8:11], s{S_HO} offen offset:{k*1024}{cfg.H_LOAD_FLAGS} lds"]))
                ops.append((POS[3] - 1, [f"s_add_u32 m0, s43, {slot*K2_XSLOT}"]))
                ops.append((POS[3], ["s_mov_b64 exec, s[48:49]",
                                f"buffer_load_dwordx4 v{V_L16}, s[12:15], s{S_XO} offen{cfg.X2_FLAGS} lds",
                                "s_mov_b64 exec, -1"]))
                ops.append((POS[4] - 1, [f"s_add_u32 m0, s36, {slot*K2_WSLOT}"]))
                ops.append((POS[4], [f"buffer_load_dwordx4 v{V_L16}, s[52:55], s{S_WO2} offen offset:1024 lds"]))
                step_x = 96 * 768 if n % 2 == 0 else 768 - 96 * 768
                ops.append((15, [f"s_add_u32 s{S_XO}, s{S_XO}, {step_x & 0xffffffff:#x}"]))
                ops.append((16, [f"s_add_u32 s{S_WO2}, s{S_WO2}, {K2_WSLOT}"]))
                ops.append((17, [f"s_add_u32 s{S_HO}, s{S_HO}, 12288"]))
                if n == 3 and var in ("first", "loop"):
                    ops.append((19, [f"s_mul_i32 s44, s{S_TILE}, {TILE*768}", "s_add_u32 s44, s44, s40"]))
                    ops.append((20, [f"s_cmp_eq_u32 s{S_BODY}, {NCW//4 - 2}",
                                     f"s_cselect_b32 s{S_HO}, s44, s{S_HO}",
                                     "s_cselect_b32 s8, s76, s8", "s_cselect_b32 s9, s37, s9",
                                     f"s_cselect_b32 s10, {X_BYTES:#x}, s10"]))
                return ops
            def next_tile():
                I(f"s_add_u32 s44, s{S_TILE}, 256")
                I(f"s_mul_i32 s{S_HO}, s44, {NCW*12288}")
                I(f"s_add_u32 s{S_HO}, s{S_HO}, s40")
                I(f"s_mul_i32 s{S_XO}, s44, {TILE*768}")
                I(f"s_add_u32 s{S_XO}, s{S_XO}, s42")
                I("s_mov_b32 s8, s80")
                I("s_mov_b32 s9, s38")
                I(f"s_mov_b32 s{S_WO2}, s36")
                I(f"s_cmp_lt_u32 s{S_RND}, 2")
                I(f"s_cselect_b32 s10, {H_WS_BYTES:#x}, 0")
                if 'k2nox' not in cfg.ABL: I(f"s_cselect_b32 s14, {X_BYTES:#x}, 0")
        for n in range(4):
            for pos, ins in sorted(dma(n, "pro"), key=lambda z: z[0]):
                for o in ins: I(o)
                if "m0" in ins[0]: I("s_nop 0")
        I("s_waitcnt vmcnt(15)")
        I("s_barrier")

        def h_read(stage, b, j, half):
            return f"ds_read_b64_tr_b16 {vr(HF(b,j)+2*half,2)}, v{V_H} offset:{(stage%4)*K2_HSLOT + j*1024 + half*512}"
        def w_read(stage, b, t):
            slot = stage % 4
            return f"ds_read_b128 {vr(WF(b,t))}, v{V_W0 if slot < 2 else V_W1} offset:{(slot%2)*K2_WSLOT + t*1024}"
        def x_read(stage):
            return f"ds_read_b96 {vr(V_XRAW,3)}, v{V_XB} offset:{(stage%4)*K2_XSLOT}"
        def x_group(g, pos, bump):
            ops = []
            for k in range(3):
                t = 3 * g + k
                src = V_XRAW + t // 2
                ops.append((pos - 6 + k, [f"v_lshlrev_b32 v{V_TMP+k}, 16, v{src}" if t % 2 == 0 else f"v_and_b32 v{V_TMP+k}, 0xffff0000, v{src}"]))
                ops.append((pos - 3 + k, [f"v_add_f32 v{V_TMP+k}, v{V_TMP+k}, v{V_BI+t}"]))
            ins = [f"s_set_gpr_idx_on s{S_U}, gpr_idx(SRC1,DST)"]
            ins += [f"v_add_f32 v{ACC(3*g+k,0)}, v{V_TMP+k}, v{ACC(3*g+k,0)}" for k in range(3)]
            ins += ["s_set_gpr_idx_off"]
            if bump: ins.append(f"s_add_u32 s{S_U}, s{S_U}, 1")
            ops.append((pos, ins))
            return ops
        def step(n, var):
            b = n % 2
            if var == "first" and n < 3:
                I(f"s_cmp_eq_u32 s{S_RND}, 0")
                I(f"s_cbranch_scc0 L_k2_{r}_rw{n}")
                I(f"s_waitcnt vmcnt({VM})")
                E(f"L_k2_{r}_rw{n}:")
                I(f"s_waitcnt vmcnt({VM+24}) lgkmcnt(0)")
            else:
                I(f"s_waitcnt vmcnt({VM}) lgkmcnt(0)")
            if 'k2nobar' not in cfg.ABL: I("s_barrier")
            ex = []
            RP = cfg.K2_RDPOS
            for k in range(12):
                ex.append((RP + k, [h_read(n + 1, 1 - b, k // 2, k % 2)]))
            ex.append((RP + 12, [w_read(n + 1, 1 - b, 4)]))
            ex.append((RP + 13, [w_read(n + 1, 1 - b, 5)]))
            for t in range(4):
                ex.append((6 * t + 5, [w_read(n + 1, 1 - b, t)]))
            if 'k2nord' in cfg.ABL: ex = []
            if (n + 1) % 2 == mg:
                ex.append((18, [x_read(n + 1)]))
            if n % 2 == 1:
                ex += x_group(1, 14, r == "W")
            if n % 2 == mg:
                ex += x_group(0, 30, r == "H")
            d = dma(n, var)
            if ('k2nodma' + r) in cfg.ABL: d = [(p, [o for o in ins if 'buffer_load' not in o]) for p, ins in d]
            ex += d
            k = 0
            for t in range(6):
                for jj in range(6):
                    j = jj if t % 2 == 0 else 5 - jj
                    c = "0" if (var == "first" and n == 0) else vr(ACC(t, j))
                    if 'k2nomfma' not in cfg.ABL: I(f"v_mfma_f32_16x16x32_bf16 {vr(ACC(t,j))}, {vr(HF(b,j))}, {vr(WF(b,t))}, {c}")
                    else: I("s_nop 0")
                    for pos, ins in ex:
                        if pos == k:
                            for o in ins: I(o)
                    k += 1
        for k in range(12): I(h_read(0, 0, k // 2, k % 2))
        for t in range(6): I(w_read(0, 0, t))
        if mg == 0: I(x_read(0))
        E(f"L_k2_{r}_tile:")
        I(f"s_mov_b32 s{S_U}, 0")
        I(f"s_mov_b32 s{S_BODY}, 0")
        for n in range(4): step(n, "first")
        I(f"s_mov_b32 s{S_BODY}, 1")
        E(".p2align 6")
        E(f"L_k2_{r}_loop:")
        for n in range(4): step(n, "loop")
        I(f"s_add_u32 s{S_BODY}, s{S_BODY}, 1")
        I(f"s_cmp_lt_u32 s{S_BODY}, 11")
        I(f"s_cbranch_scc1 L_k2_{r}_loop")
        if r == "H": next_tile()
        for n in range(4): step(n, "last")
        stamp(1)
        I(f"s_mul_i32 s{S_SO}, s{S_TILE}, {TILE*768}")
        if 'k2linst' in cfg.ABL:
            I(f"s_mul_i32 s45, s{S_W}, 18432"); I(f"s_add_u32 s45, s45, s{S_SO}")
        I(f"s_add_u32 s{S_SO}, s{S_SO}, s34")
        I(f"s_add_u32 s{S_SO}, s{S_SO}, {20*768}")
        I("s_nop 4")
        for j in (5, 4, 3, 2, 1, 0):
            for rr in range(4):
                u = 4 * j + rr
                q = HF(1, u % 6)
                for k in range(3):
                    I(f"v_cvt_pk_bf16_f32 v{q+k}, v{ACC(2*k,j)+rr}, v{ACC(2*k+1,j)+rr}")
                if 'k2nost' in cfg.ABL: I(f"buffer_store_dwordx3 {vr(q,3)}, v{V_ST}, s[20:23], s{S_SO} offen offset:{rr*768+1600}")
                elif 'k2linst' in cfg.ABL:
                    if u % 4 != 3: I(f"buffer_store_dwordx4 {vr(q,4)}, v{V_L16}, s[16:19], s45 offen offset:{(u%4)*1024}{cfg.OUT_FLAGS}")
                    else: I(f"buffer_store_dwordx3 {vr(q,3)}, v{V_ST}, s[20:23], s{S_SO} offen offset:{rr*768+1600}"); I("s_add_u32 s45, s45, 3072")
                else: I(f"buffer_store_dwordx3 {vr(q,3)}, v{V_ST}, s[16:19], s{S_SO} offen offset:{rr*768}{cfg.OUT_FLAGS}")
            I(f"s_sub_u32 s{S_SO}, s{S_SO}, 3072")
        I(f"s_add_u32 s{S_RND}, s{S_RND}, 1")
        I(f"s_add_u32 s{S_TILE}, s{S_TILE}, 256")
        I(f"s_cmp_lt_u32 s{S_RND}, 3")
        I(f"s_cbranch_scc1 L_k2_{r}_tile")
        stamp(2)
        stamp_out(S_W, (5, 200), "k2" + r)
        I("s_endpgm")
    role("W")
    E("L_k2_H:")
    role("H")
    E("L_k2_end:")
    I("s_endpgm")
    return K2_LDS

def descriptor(name, vgpr, sgpr=100):
    E(".p2align 6")
    E(f".amdhsa_kernel {name}")
    E(f"  .amdhsa_next_free_vgpr {vgpr}")
    E(f"  .amdhsa_next_free_sgpr {sgpr}")
    E(f"  .amdhsa_accum_offset {(vgpr+3)//4*4}")
    E("  .amdhsa_group_segment_fixed_size 0")
    E("  .amdhsa_kernarg_size 72")
    E("  .amdhsa_user_sgpr_count 2")
    E("  .amdhsa_user_sgpr_kernarg_segment_ptr 1")
    E("  .amdhsa_system_sgpr_workgroup_id_x 1")
    E(".end_amdhsa_kernel")

E('.amdgcn_target "amdgcn-amd-amdhsa--gfx950"')
E(".text")
gen_k0()
gen_k1()
gen_kmid()
k2_lds = gen_k2()
E('.section .rodata,"a"')
descriptor("prep_kernel", 48)
descriptor("ln_gemm1_kernel", 256)
descriptor("grn_kernel", 64 if cfg.NREP <= 8 else 96)
descriptor("gemm2_kernel", 256)

hdr = f"""; SLaK / ConvNeXt-v2 style block, K=1 depthwise: out = x + GRN(gelu(LN(x*dw) @ w1)) @ w2
; @launch kernel=prep_kernel grid=(336,1,1) block=(256,1,1) lds=0
; @launch kernel=ln_gemm1_kernel grid=(256,1,1) block=(512,1,1) lds={K1_LDS}
; @launch kernel=grn_kernel grid=(145,1,1) block=(512,1,1) lds=8192
; @launch kernel=gemm2_kernel grid=(256,1,1) block=(512,1,1) lds={k2_lds}
"""
open(sys.argv[1], "w").write(hdr + "\n".join(out) + "\n")
```

```python
import math, struct, sys

def f32(x):
    return "0x%08x" % struct.unpack("<I", struct.pack("<f", x))[0]

M = 147456; C = 384; H = 1536
TILE = 192; NT = M // TILE
NCH = 48
X_BYTES = M * C * 2
WS_BYTES = 452984832
K0c = 2.0 * math.sqrt(2.0 / math.pi)
LOG2E = 1.4426950408889634
C0 = K0c * LOG2E
C1 = K0c * 0.044715 * LOG2E
GAMMA = C1 ** (1.0 / 3.0)
CC = C0 / GAMMA

class Cfg:
    NC_OUT = 12
    NREP = 8
    H_STORE_FLAGS = " nt"
    H3_STORE_FLAGS = ""
    H_LOAD_FLAGS = " nt"
    X1_FLAGS = ""
    X2_FLAGS = " nt"
    OUT_FLAGS = ""
    K2_SCH = ' 2 6 38 5 2 6'
    K2_XP = ' 4 7'
    W2_FLAGS = ''
    K2_CPF = 1
    K2_HOLD = 50
    K2_TEND = 18
    ABL = ''
cfg = Cfg()
for a in sys.argv[2:]:
    k, v = a.split("=", 1)
    cur = getattr(cfg, k)
    setattr(cfg, k, int(v) if isinstance(cur, int) else ((" " + v.replace(",", " ")) if v else ""))

NCW = NCH - cfg.NC_OUT
H_WS_BYTES = NT * NCW * 12288
WF_BYTES = C * H * 2
OFF_W1F = H_WS_BYTES
OFF_W2S = OFF_W1F + WF_BYTES
OFF_SUM = OFF_W2S + WF_BYTES
OFF_BP = OFF_SUM + cfg.NREP * H * 4
OFF_BIAS = OFF_BP + 48 * C * 4
assert OFF_BIAS + C * 4 <= WS_BYTES

out = []
def E(s=""):
    out.append(s)
def I(s):
    out.append("    " + s)

def srd(d, base, nbytes, off=0):
    if off:
        I(f"s_add_u32 s{d}, s{base}, {off:#x}")
        I(f"s_addc_u32 s{d+1}, s{base+1}, 0")
        I(f"s_and_b32 s{d+1}, s{d+1}, 0xffff")
    else:
        I(f"s_mov_b32 s{d}, s{base}")
        I(f"s_and_b32 s{d+1}, s{base+1}, 0xffff")
    I(f"s_mov_b32 s{d+2}, {nbytes:#x}")
    I(f"s_mov_b32 s{d+3}, 0x20000")

def head(name):
    E(f".globl {name}")
    E(".p2align 8")
    E(f".type {name},@function")
    E(f"{name}:")

def vr(a, n=4):
    return f"v[{a}:{a+n-1}]"

def interleave(slots, fill, lead=0):
    n = len(slots); k = 0
    for i, s in enumerate(slots):
        for x in s: I(x)
        tgt = min(len(fill), ((i + 1) * len(fill) + n - 1) // n + lead)
        while k < tgt:
            I(fill[k]); k += 1
    while k < len(fill):
        I(fill[k]); k += 1


def stamp(n):
    if 'prof' not in cfg.ABL: return
    I(f"s_memtime s[{84+4*n}:{85+4*n}]")
    I(f"s_memrealtime s[{86+4*n}:{87+4*n}]")
    I("s_waitcnt lgkmcnt(0)")
PROF_OFF = WS_BYTES - (1 << 20)
def stamp_out(wavereg, kidx, tag):
    if 'prof' not in cfg.ABL: return
    lab = f"L_prof_{tag}"
    I(f"s_and_b32 s62, s{wavereg}, 3")
    I("s_cmp_eq_u32 s62, 0")
    I(f"s_cbranch_scc0 {lab}")
    srd(96, 80, 1 << 20, PROF_OFF)
    I("v_mov_b32 v20, s86")
    I("v_mov_b32 v21, s90")
    I("v_mov_b32 v22, s94")
    I("s_sub_u32 s62, s92, s84")
    I("s_getreg_b32 s63, hwreg(HW_REG_XCC_ID)")
    I("s_lshl_b32 s63, s63, 28")
    I("s_or_b32 s62, s62, s63")
    I("v_mov_b32 v23, s62")
    I(f"s_lshr_b32 s62, s{wavereg}, 2")
    I("s_lshl_b32 s63, s2, 1")
    I("s_add_u32 s62, s62, s63")
    I("s_lshl_b32 s62, s62, 4")
    I(f"s_add_u32 s62, s62, {kidx * 65536}")
    I("v_mov_b32 v24, 0")
    I("buffer_store_dwordx4 v[20:23], v24, s[96:99], s62 offen")
    E(lab + ":")


_tick = [0]
def tick(tid, wavereg, init=False, key='tick', vr0=10):
    if key not in cfg.ABL.split(): return
    _tick[0] += 1
    lab = f"L_tick{_tick[0]}"
    if init:
        srd(96, 80, 1 << 20, PROF_OFF)
        I(f"s_lshl_b32 s100, s{wavereg}, 12")
        I("s_add_u32 s100, s100, 0x40000")
    I("s_cmp_eq_u32 s2, 5")
    I(f"s_cbranch_scc0 {lab}")
    I("s_memtime s[82:83]")
    I(f"v_mov_b32 v{vr0}, {tid}")
    I("s_waitcnt lgkmcnt(0)")
    I(f"v_mov_b32 v{vr0+1}, s82")
    I(f"buffer_store_dwordx2 v[{vr0}:{vr0+1}], off, s[96:99], s100")
    I("s_add_u32 s100, s100, 8")
    E(lab + ":")

def load_args():
    I("s_load_dwordx16 s[64:79], s[0:1], 0")
    I("s_load_dwordx2 s[80:81], s[0:1], 64")

def gen_k0():
    head("prep_kernel")
    I("s_cmp_ge_u32 s2, 336")
    I("s_cbranch_scc1 L_k0_end")
    stamp(0); stamp(1)
    load_args()
    I("s_cmp_ge_u32 s2, 288")
    I("s_cbranch_scc1 L_k0_bias")
    I("v_lshrrev_b32 v1, 6, v0")
    I("v_and_b32 v2, 15, v0")
    I("v_readfirstlane_b32 s3, v1")
    I("v_bfe_u32 v3, v0, 4, 2")
    I("s_lshl_b32 s4, s2, 2")
    I("s_add_u32 s4, s4, s3")
    I("s_mul_i32 s5, s4, 43691")
    I("s_lshr_b32 s5, s5, 19")
    I("s_mul_i32 s6, s5, 12")
    I("s_sub_u32 s6, s4, s6")
    I("s_mul_i32 s7, s6, %d" % (32 * 3072))
    I("s_lshl_b32 s5, s5, 5")
    I("s_add_u32 s7, s7, s5")
    I("v_mul_u32_u24 v4, %d, v3" % (8 * 3072))
    I("v_lshl_add_u32 v4, v2, 1, v4")
    I("s_waitcnt lgkmcnt(0)")
    srd(8, 68, WF_BYTES)
    srd(12, 80, WF_BYTES, OFF_W1F)
    for e in range(8):
        I(f"buffer_load_ushort v{8+e}, v4, s[8:11], s7 offen")
        if e < 7:
            I("s_add_u32 s7, s7, 3072")
    I("v_and_b32 v5, 63, v0")
    I("v_lshlrev_b32 v5, 4, v5")
    I("s_lshl_b32 s4, s4, 10")
    I("s_waitcnt vmcnt(0)")
    for i in range(4):
        I(f"v_lshl_or_b32 v{16+i}, v{9+2*i}, 16, v{8+2*i}")
    I("buffer_store_dwordx4 v[16:19], v5, s[12:15], s4 offen")
    stamp(2); stamp_out(3, 0, "k0")
    I("s_endpgm")
    E("L_k0_bias:")
    I("s_sub_u32 s3, s2, 288")
    I("s_waitcnt lgkmcnt(0)")
    srd(8, 70, WF_BYTES)
    srd(12, 80, cfg.NREP * H * 4, OFF_SUM)
    srd(16, 80, 48 * C * 4, OFF_BP)
    I("s_lshl_b32 s4, s3, 6")
    I("s_add_u32 s20, s74, s4")
    I("s_addc_u32 s21, s75, 0")
    I("s_load_dwordx16 s[32:47], s[20:21], 0")
    per = cfg.NREP * H * 4 // 48
    assert per % 1024 == 0
    I("v_lshlrev_b32 v1, 2, v0")
    I("v_mov_b32 v2, 0")
    I(f"s_mul_i32 s5, s3, {per}")
    for i in range(per // 1024):
        I(f"buffer_store_dword v2, v1, s[12:15], s5 offen offset:{i*1024}")
    I("v_cmp_gt_u32 vcc, 192, v0")
    I("s_and_saveexec_b64 s[22:23], vcc")
    I("s_cbranch_execz L_k0_end")
    I("s_mul_i32 s6, s3, %d" % (32 * 768))
    for r in range(32):
        I(f"buffer_load_dword v{8+r}, v1, s[8:11], s6 offen offset:{(r%4)*768}")
        if r % 4 == 3 and r < 31:
            I("s_add_u32 s6, s6, 3072")
    I("v_mov_b32 v4, 0")
    I("v_mov_b32 v5, 0")
    I("s_waitcnt lgkmcnt(0)")
    for r in range(32):
        I(f"s_waitcnt vmcnt({31-r})")
        if r % 2 == 0:
            I(f"s_lshl_b32 s7, s{32+r//2}, 16")
        else:
            I(f"s_and_b32 s7, s{32+r//2}, 0xffff0000")
        I(f"v_lshlrev_b32 v6, 16, v{8+r}")
        I(f"v_and_b32 v7, 0xffff0000, v{8+r}")
        I("v_fmac_f32 v4, s7, v6")
        I("v_fmac_f32 v5, s7, v7")
    I("v_lshlrev_b32 v1, 3, v0")
    I("s_mul_i32 s6, s3, %d" % (C * 4))
    I("buffer_store_dwordx2 v[4:5], v1, s[16:19], s6 offen")
    E("L_k0_end:")
    I("s_endpgm")

K1_SLOT = 24576
K1_SUM = 4 * K1_SLOT
K1_SCR = K1_SUM + 16384
K1_LDS = K1_SCR + 4 * 12288
def gen_k1():
    assert NCW % 4 == 0
    A = lambda j, s: 112 + (j * 12 + s) * 4
    ACC = lambda a, j: 88 + 12 * a + 4 * j
    BF = lambda b, i: 56 + 16 * b + 4 * i
    OUT = lambda j: 44 + 4 * j
    TMP = 32
    V_L16, V_RD2, V_SW, V_ST, V_X, V_SR, V_AT = 1, 2, 3, 4, 5, 6, 7
    V_SQ = 8
    V_RED = 12
    (S_W, S_WOFF, S_HOFF, S_C, S_NEGC, S_T, S_EVT, S_P, S_TILE, S_TILE2, S_N2, S_WEND, S_W3, S_XW,
     S_MODE, S_AT, S_ATN, S_WL, S_DB, S_G) = (3, 6, 7, 24, 25, 26, 32, 33, 34, 35, 36, 38, 39, 40, 42, 44, 45, 46, 47, 48)
    D0, D1 = 4, 4
    head("ln_gemm1_kernel")
    I("s_cmp_ge_u32 s2, 256")
    I("s_cbranch_scc1 L_k1_end")
    stamp(0)
    load_args()
    I("v_lshrrev_b32 v16, 6, v0")
    I("v_and_b32 v17, 63, v0")
    I(f"v_readfirstlane_b32 s{S_W}, v16")
    I("v_and_b32 v18, 15, v0")
    I("v_bfe_u32 v19, v0, 4, 2")
    I(f"v_lshlrev_b32 v{V_L16}, 4, v17")
    I(f"v_mul_u32_u24 v{V_X}, 768, v19")
    I(f"v_lshl_add_u32 v{V_X}, v18, 4, v{V_X}")
    I(f"s_and_b32 s{S_WL}, s{S_W}, 3")
    I(f"s_lshr_b32 s{S_G}, s{S_W}, 2")
    I("s_lshr_b32 s27, s2, 4")
    I("s_lshl_b32 s28, s27, 3")
    I("s_and_b32 s29, s2, 7")
    I("s_or_b32 s28, s28, s29")
    I("s_mul_i32 s29, s27, 3")
    I("s_lshr_b32 s29, s29, 3")
    I("s_lshl_b32 s29, s29, 2")
    I("s_bfe_u32 s30, s2, 0x10003")
    I("s_mul_i32 s30, s30, 24")
    I("s_add_u32 s49, s29, s30")
    I("s_add_u32 s29, s2, 384")
    I("s_add_u32 s30, s2, 128")
    I("s_add_u32 s31, s28, 640")
    I(f"s_add_u32 s27, s49, {D0}")
    I(f"s_cmp_eq_u32 s{S_G}, 0")
    I(f"s_cselect_b32 s{S_TILE}, s29, s31")
    I(f"s_cselect_b32 s{S_TILE2}, s28, s30")
    I(f"s_cselect_b32 s{S_P}, 12, 6")
    I(f"s_cselect_b32 s{S_N2}, 6, 12")
    I(f"s_cselect_b32 s{S_MODE}, 1, 0")
    I(f"s_cselect_b32 s{S_C}, s49, s27")
    I(f"s_mul_i32 s{S_W3}, s{S_WL}, 3072")
    I(f"s_lshr_b32 s27, s{S_WL}, 1")
    I(f"s_mul_i32 s27, s27, {96*768}")
    I(f"s_and_b32 s28, s{S_WL}, 1")
    I(f"s_mul_i32 s28, s28, {12*768}")
    I(f"s_add_u32 s{S_XW}, s27, s28")
    I(f"s_mul_i32 s{S_DB}, s{S_W}, 3072")
    I(f"s_add_u32 s{S_WEND}, s{S_DB}, {WF_BYTES}")
    I(f"s_mul_i32 s{S_WOFF}, s49, {K1_SLOT}")
    I(f"s_add_u32 s{S_WOFF}, s{S_WOFF}, s{S_DB}")
    I("s_waitcnt lgkmcnt(0)")
    srd(8, 64, X_BYTES)
    srd(28, 66, C * 2)
    srd(12, 80, WF_BYTES, OFF_W1F)
    tick(1, S_W, init=True)
    def xhead():
        I(f"s_mul_i32 s{S_T}, s{S_TILE}, {TILE*768}")
        I(f"s_add_u32 s{S_T}, s{S_T}, s{S_XW}")
        I(f"v_and_b32 v10, 0xf0, v{V_L16}")
        for P in range(3):
            I(f"buffer_load_dwordx4 {vr(64+4*P)}, v10, s[28:31], 0 offen offset:{P*256}")
    def xl_ops(j):
        ops = []
        for n in range(4):
            for P in range(3):
                o = [f"s_add_u32 s27, s{S_T}, {j*3072 + n*18432}"] if P == 0 else []
                ops.append(o + [f"buffer_load_dwordx4 {vr(A(j,4*P+n))}, v{V_X}, s[8:11], s27 offen offset:{P*256}{cfg.X1_FLAGS}"])
        return ops
    def xl(j):
        for grp in xl_ops(j):
            for o in grp: I(o)
    def piece(k, slot):
        pre = [f"s_add_u32 m0, s{S_DB}, {slot*K1_SLOT}"] if k == 0 else []
        ld = f"buffer_load_dwordx4 v{V_L16}, s[12:15], s{S_WOFF} offen offset:{k*1024} lds"
        post = []
        if k == 2:
            post = [f"s_add_u32 s{S_WOFF}, s{S_WOFF}, {K1_SLOT}"]
            if slot == 3:
                post += [f"s_cmp_ge_u32 s{S_WOFF}, s{S_WEND}", f"s_cselect_b32 s{S_WOFF}, s{S_DB}, s{S_WOFF}"]
        return pre, ld, post
    def pieces(ks, slot):
        for k in ks:
            pre, ld, post = piece(k, slot)
            for o in pre: I(o)
            if pre: I("s_nop 0")
            I(ld)
            for o in post: I(o)
    def setup_rest():
        srd(16, 80, H_WS_BYTES)
        srd(52, 76, X_BYTES)
        srd(20, 80, cfg.NREP * H * 4, OFF_SUM)
        I(f"v_add_u32 v{V_RD2}, {2*K1_SLOT}, v{V_L16}")
        I(f"s_lshl_b32 s27, s{S_G}, 13")
        I(f"s_add_u32 s27, s27, {K1_SUM}")
        I(f"v_lshl_add_u32 v20, v17, 2, s27")
        I(f"s_lshl_b32 s27, s{S_WL}, 8")
        I(f"v_add_u32 v{V_SW}, s27, v20")
        I(f"s_lshl_b32 s27, s{S_WL}, 10")
        I("s_add_u32 s27, s27, 4096")
        I(f"v_add_u32 v{V_SR}, s27, v20")
        I(f"v_and_b32 v{V_AT}, 31, v17")
        I(f"v_lshlrev_b32 v{V_AT}, 2, v{V_AT}")
        I("s_lshr_b32 s50, s2, 3")
        I(f"s_and_b32 s50, s50, {cfg.NREP-1}")
        I(f"s_mul_i32 s50, s50, {H*4}")
        I(f"s_lshl_b32 s27, s{S_WL}, 7")
        I("s_add_u32 s50, s50, s27")
        I(f"s_mov_b32 s{S_ATN}, 0x40000000")
        I("v_lshrrev_b32 v20, 2, v18")
        I(f"v_lshlrev_b32 v{V_ST}, 8, v20")
        I(f"v_lshl_add_u32 v{V_ST}, v19, 6, v{V_ST}")
        I("v_and_b32 v20, 3, v18")
        I(f"v_lshl_add_u32 v{V_ST}, v20, 4, v{V_ST}")
        I(f"s_mov_b32 s{S_NEGC}, {f32(-CC)}")
        I("s_mov_b32 s51, 0xffff0000")
        I(f"s_lshl_b32 s4, s{S_W3}, 2")
        I(f"s_add_u32 s4, s4, {K1_SCR}")
        I("s_mov_b32 s5, 1")
    def marker(vm, slot, ks=(0, 1, 2)):
        if vm is not None: I(f"s_waitcnt vmcnt({vm})")
        I("s_barrier")
        pieces(ks, slot)
    I(f"s_cmp_eq_u32 s{S_G}, 0")
    I("s_cbranch_scc0 L_k1_startB")
    xhead(); xl(0); xl(1)
    I(f"s_add_u32 s{S_WOFF}, s{S_WOFF}, {3*K1_SLOT}")
    setup_rest()
    I("s_branch L_k1_ln")
    E("L_k1_startB:")
    for sl in range(4):
        if sl < 3:
            I(f"s_add_u32 m0, s{S_W3}, {sl*K1_SLOT}")
            I(f"s_sub_u32 s27, s{S_WOFF}, 12288")
            for k in range(3):
                I(f"buffer_load_dwordx4 v{V_L16}, s[12:15], s27 offen offset:{k*1024} lds")
        pieces([0, 1, 2], sl)
    setup_rest()
    I("s_waitcnt vmcnt(0)")
    I("s_barrier")
    xhead(); xl(0); xl(1)
    I("s_barrier")
    def hpos():
        I(f"s_cmp_ge_u32 s{S_C}, {NCH}")
        I(f"s_cselect_b32 s27, {NCH}, 0")
        I(f"s_sub_u32 s{S_C}, s{S_C}, s27")
        I(f"s_mul_i32 s27, s{S_TILE}, 12")
        I(f"s_lshr_b32 s43, s{S_C}, 2")
        I("s_add_u32 s27, s27, s43")
        I(f"s_mul_i32 s{S_HOFF}, s27, {3*12288}")
        I(f"s_add_u32 s{S_HOFF}, s{S_HOFF}, s{S_W3}")
        I(f"s_mul_i32 s{S_EVT}, s27, 12288")
        I(f"s_add_u32 s{S_EVT}, s{S_EVT}, s{S_W3}")
    E("L_k1_ln:")
    tick(2, S_W)
    hpos()
    DW = 16; ST = 40; AW = 56; AR = 60; T0 = 64
    I(f"v_lshrrev_b32 v48, 4, v{V_L16}")
    I("v_and_b32 v49, 15, v48")
    I("v_lshrrev_b32 v50, 4, v48")
    I("v_xor_b32 v51, v49, v50")
    I("v_lshlrev_b32 v51, 4, v51")
    I("s_mov_b32 s27, s4")
    I("v_lshl_add_u32 v52, v50, 8, v51")
    I("v_lshl_add_u32 v53, v49, 8, v51")
    for n in range(4):
        I(f"v_xor_b32 v{AW+n}, {n<<6}, v52")
        I(f"v_xor_b32 v{AR+n}, {n<<6}, v53")
    for n in range(4):
        I(f"v_add_u32 v{AW+n}, s27, v{AW+n}")
        I(f"v_add_u32 v{AR+n}, s27, v{AR+n}")
    for j in range(3):
        if j > 0: tick(20 + j, S_W)
        I(f"s_cmp_eq_u32 s{S_MODE}, 1")
        I(f"s_cbranch_scc1 L_k1_sa{j}")
        marker(27 if j == 0 else None, j)
        I(f"s_waitcnt vmcnt({(15, 18, 6)[j]}) lgkmcnt(0)")
        I(f"s_branch L_k1_sc{j}")
        E(f"L_k1_sa{j}:")
        if j == 1: I("s_barrier")
        I(f"s_waitcnt vmcnt({(12, 12, 0)[j]})")
        E(f"L_k1_sc{j}:")
        tick(10 + j, S_W)
        if j == 0:
            for P in range(3):
                for i in range(4):
                    I(f"v_lshlrev_b32 v{DW+8*P+2*i}, 16, v{64+4*P+i}")
                    I(f"v_and_b32 v{DW+8*P+2*i+1}, 0xffff0000, v{64+4*P+i}")
        for P in range(3):
            for n in range(4):
                R = [A(j, 4*P+n) + i for i in range(4)]
                T = [T0 + 4 * (4*P+n) + i for i in range(4)]
                d = DW + 8 * P
                if j == 0:
                    for o in xl_ops(2)[4*P+n]: I(o)
                for i in range(4): I(f"v_lshlrev_b32 v{T[i]}, 16, v{R[i]}")
                for i in range(4): I(f"v_and_b32 v{R[i]}, s51, v{R[i]}")
                for i in range(4): I(f"v_mul_f32 v{T[i]}, v{T[i]}, v{d+2*i}")
                for i in range(4): I(f"v_mul_f32 v{R[i]}, v{R[i]}, v{d+2*i+1}")
                su, sq = ST + n, ST + 4 + n
                for i in range(4):
                    if P == 0 and i == 0:
                        I(f"v_add_f32 v{su}, v{T[i]}, v{R[i]}")
                        I(f"v_mul_f32 v{sq}, v{T[i]}, v{T[i]}")
                    else:
                        I(f"v_add_f32 v{su}, v{su}, v{T[i]}")
                        I(f"v_fmac_f32 v{sq}, v{T[i]}, v{T[i]}")
                        I(f"v_add_f32 v{su}, v{su}, v{R[i]}")
                    I(f"v_fmac_f32 v{sq}, v{R[i]}, v{R[i]}")
        I("s_nop 1")
        for ror in (8, 4, 2, 1):
            for k in range(8):
                I(f"v_add_f32_dpp v{ST+k}, v{ST+k}, v{ST+k} row_ror:{ror} row_mask:0xf bank_mask:0xf")
        for k in range(8): I(f"v_mul_f32 v{ST+k}, {f32(1.0/C)}, v{ST+k}")
        for n in range(4): I(f"v_fma_f32 v{ST+4+n}, -v{ST+n}, v{ST+n}, v{ST+4+n}")
        for n in range(4): I(f"v_max_f32 v{ST+4+n}, 0, v{ST+4+n}")
        for n in range(4): I(f"v_add_f32 v{ST+4+n}, {f32(1e-5)}, v{ST+4+n}")
        for n in range(4): I(f"v_rsq_f32 v{ST+4+n}, v{ST+4+n}")
        for n in range(4): I(f"v_mul_f32 v{ST+4+n}, {f32(GAMMA)}, v{ST+4+n}")
        for n in range(4): I(f"v_mul_f32 v{ST+n}, v{ST+n}, v{ST+4+n}")
        for P in range(3):
            for n in range(4):
                R = [A(j, 4*P+n) + i for i in range(4)]
                T = [T0 + 4 * (4*P+n) + i for i in range(4)]
                for i in range(4): I(f"v_fma_f32 v{T[i]}, v{T[i]}, v{ST+4+n}, -v{ST+n}")
                for i in range(4): I(f"v_fma_f32 v{R[i]}, v{R[i]}, v{ST+4+n}, -v{ST+n}")
                for i in range(4): I(f"v_cvt_pk_bf16_f32 v{R[i]}, v{T[i]}, v{R[i]}")
                I(f"ds_write_b128 v{AW+n}, {vr(R[0])} offset:{n*1024}")
            for n in range(4):
                I(f"ds_read_b128 {vr(A(j, 4*P+n))}, v{AR+n}")
    def gelu(a, t, q):
        ops = []
        for j in range(3):
            z = [ACC(a, j) + r for r in range(4)]
            tt = [TMP + 4 * j + r for r in range(4)]
            ops += [f"v_fma_f32 v{tt[r]}, -v{z[r]}, v{z[r]}, s{S_NEGC}" for r in range(4)]
            ops += [f"v_mul_f32 v{tt[r]}, v{z[r]}, v{tt[r]}" for r in range(4)]
            ops += [f"v_exp_f32 v{tt[r]}, v{tt[r]}" for r in range(4)]
            ops += [f"v_add_f32 v{tt[r]}, 1.0, v{tt[r]}" for r in range(4)]
            ops += [f"v_rcp_f32 v{tt[r]}, v{tt[r]}" for r in range(4)]
            ops += [f"v_mul_f32 v{tt[r]}, v{z[r]}, v{tt[r]}" for r in range(4)]
            sq = []
            for r in range(4):
                if j == 0 and r == 0:
                    sq.append(f"v_mul_f32 v{V_SQ+t}, v{tt[r]}, v{tt[r]}")
                else:
                    sq.append(f"v_fmac_f32 v{V_SQ+t}, v{tt[r]}, v{tt[r]}")
            cv = [f"v_cvt_pk_bf16_f32 v{OUT(j)+2*t}, v{tt[0]}, v{tt[1]}",
                  f"v_cvt_pk_bf16_f32 v{OUT(j)+2*t+1}, v{tt[2]}, v{tt[3]}"]
            ops += sq + cv
            if t == 1 and j == 2:
                ops.append(f"v_permlane16_swap_b32 v{V_SQ}, v{V_SQ+1}")
            if t == 1 and 'k1nostore' not in cfg.ABL:
                if q < 3: ops.append(f"buffer_store_dwordx4 {vr(OUT(j))}, v{V_ST}, s[16:19], s{S_HOFF} offen offset:{j*1024}{cfg.H_STORE_FLAGS}")
                else: ops.append(f"buffer_store_dwordx4 {vr(OUT(j))}, v{V_ST}, s[52:55], s{S_EVT} offen offset:{j*1024}{cfg.H3_STORE_FLAGS}")
        if t == 1:
            ops.append(f"v_add_f32 v{V_SQ+1}, v{V_SQ}, v{V_SQ+1}")
        return ops
    def sum_write(q):
        return f"ds_write_b32 v{V_SW}, v{V_SQ+1} offset:{q*1024}"
    def reads(q, G):
        base = V_L16 if q < 2 else V_RD2
        return [f"ds_read_b128 {vr(BF(G%2, i))}, v{base} offset:{(q%2)*K1_SLOT + (G*4+i)*1024}" for i in range(4)]
    red_rd = [f"ds_read_b32 v{V_RED+k}, v{V_SR} offset:{k*256}" for k in range(4)]
    red_add = [f"v_add_f32 v{V_RED}, v{V_RED}, v{V_RED+1}", f"v_add_f32 v{V_RED+2}, v{V_RED+2}, v{V_RED+3}",
               f"v_add_f32 v{V_RED}, v{V_RED}, v{V_RED+2}"]
    red_at = f"buffer_atomic_add_f32 v{V_RED}, v{V_AT}, s[20:23], s{S_AT} offen"
    def half(q, t, fill, extra={}):
        slots = []
        for g in range(3):
            G = 3 * t + g
            has_d = G % 2 == 1
            pre_d, ld_d, post_d = piece(((G + 1) // 2) % 3, q if G == 5 else (q - 1) % 4)
            if 'k1nodma' in cfg.ABL: ld_d = "s_nop 0"
            for j in range(3):
                for i in range(4):
                    pre = []
                    if j == 0 and i == 0:
                        if G == 5:
                            pre.append("s_waitcnt vmcnt(12) lgkmcnt(0)")
                            pre.append("s_barrier")
                        else:
                            pre.append("s_waitcnt lgkmcnt(0)")
                    s = 4 * g + i
                    c = "0" if s == 0 else vr(ACC(t, j))
                    sl = pre + [f"v_mfma_f32_16x16x32_bf16 {vr(ACC(t,j))}, {vr(A(j,s))}, {vr(BF(G%2,i))}, {c}"]
                    if j == 0:
                        sl.append(reads(q if G < 5 else (q + 1) % 4, (G + 1) % 6)[i])
                    if has_d:
                        if j == 1 and i == 0: sl += pre_d
                        if j == 1 and i == 1: sl.append(ld_d)
                        if j == 1 and i == 2: sl += post_d
                    sl += extra.get(12 * g + 4 * j + i, [])
                    slots.append(sl)
        interleave(slots, fill)
    new_group = [f"v_xor_b32 v{V_SW}, 0x1000, v{V_SW}", f"v_xor_b32 v{V_SR}, 0x1000, v{V_SR}"]
    new_at = [f"s_mov_b32 s{S_AT}, s{S_ATN}", f"s_lshl_b32 s{S_ATN}, s{S_C}, 7", f"s_add_u32 s{S_ATN}, s{S_ATN}, s50"]
    stamp(1)
    tick(23, S_W)
    I("s_waitcnt lgkmcnt(0)")
    marker(0, 3, ks=(0,))
    tick(30, S_W)
    I(f"s_mov_b32 s{S_MODE}, 0")
    for o in reads(0, 0): I(o)
    half(0, 0, [])
    I("s_branch L_k1_mid")
    E("L_k1_evt:")
    hpos()
    I("s_branch L_k1_mid")
    E("L_k1_pf:")
    I(f"s_mul_i32 s{S_T}, s{S_TILE2}, {TILE*768}")
    I(f"s_add_u32 s{S_T}, s{S_T}, s{S_XW}")
    for n in range(4):
        I(f"s_add_u32 s27, s{S_T}, {n*18432}")
        for P in range(3):
            I(f"s_add_u32 m0, s4, {(4*P+n)*1024 - P*256}")
            I("s_nop 0")
            I(f"buffer_load_dwordx4 v{V_X}, s[8:11], s27 offen offset:{P*256}{cfg.X1_FLAGS} lds")
    I(f"s_add_u32 m0, s{S_DB}, {3*K1_SLOT}")
    I("s_mov_b32 s5, -1")
    E(".p2align 6")
    E("L_k1_loop:")
    half(0, 0, gelu(1, 1, 3))
    I(sum_write(3))
    I(f"s_add_u32 s{S_EVT}, s{S_EVT}, 12288")
    I(f"s_add_u32 s{S_C}, s{S_C}, 4")
    I(f"s_cmp_eq_u32 s{S_C}, {NCH}")
    I("s_cbranch_scc1 L_k1_evt")
    E("L_k1_mid:")
    tick(40, S_W)
    half(0, 1, gelu(0, 0, 0), {17: new_group[:1], 18: new_group[1:], 20: new_at})
    for q in range(1, 4):
        ex = {}
        if q == 1:
            ex = {5 + k: [red_rd[k]] for k in range(4)}
            ex.update({13: [red_add[0]], 14: [red_add[1]], 20: [red_add[2]]})
            if 'k1noadd' not in cfg.ABL: ex[22] = [red_at]
        half(q, 0, gelu(1, 1, q - 1), ex)
        ex = {4: [sum_write(q - 1)], 5: [f"s_add_u32 s{S_HOFF}, s{S_HOFF}, 12288"]}
        if q == 3: ex[30] = [f"s_sub_u32 s{S_P}, s{S_P}, 1"]
        half(q, 1, gelu(0, 0, q), ex)
    I(f"s_cmp_eq_u32 s{S_P}, s5")
    I("s_cbranch_scc1 L_k1_pf")
    I(f"s_cmp_lg_u32 s{S_P}, 0")
    I("s_cbranch_scc1 L_k1_loop")
    tick(50, S_W)
    I("s_nop 7")
    for o in gelu(1, 1, 3):
        if 'permlane' in o: I("s_nop 1")
        I(o)
    I(sum_write(3))
    pieces([1, 2], 3)
    I("s_waitcnt lgkmcnt(0)")
    I(f"s_cmp_eq_u32 s{S_N2}, 0")
    I("s_cbranch_scc1 L_k1_fin")
    I(f"s_add_u32 s{S_C}, s{S_C}, {4+D1}")
    I(f"s_mov_b32 s{S_TILE}, s{S_TILE2}")
    I(f"s_mov_b32 s{S_P}, s{S_N2}")
    I(f"s_mov_b32 s{S_N2}, 0")
    I(f"v_add_u32 v11, s4, v{V_L16}")
    for k in range(12):
        I(f"ds_read_b128 {vr(A(0,k))}, v11 offset:{k*1024}")
    xhead(); xl(1)
    I("s_branch L_k1_ln")
    E("L_k1_fin:")
    marker(12, 0)
    I(new_group[1])
    I(new_at[0])
    for o in red_rd: I(o)
    I("s_waitcnt lgkmcnt(0)")
    for o in red_add: I(o)
    I(red_at)
    I(f"s_cmp_eq_u32 s{S_G}, 0")
    I("s_cbranch_scc0 L_k1_done")
    for m in range(1, D0 - 4):
        marker(6, m % 4)
    E("L_k1_done:")
    tick(60, S_W)
    I("s_waitcnt vmcnt(0)")
    stamp(2)
    stamp_out(S_W, 1, "k1")
    E("L_k1_end:")
    I("s_endpgm")

def gen_kmid():
    head("grn_kernel")
    I("s_cmp_gt_u32 s2, 144")
    I("s_cbranch_scc1 L_km_end")
    stamp(0); stamp(1)
    load_args()
    I("s_cmp_eq_u32 s2, 144")
    I("s_cbranch_scc1 L_km_bias")
    I("v_lshrrev_b32 v1, 6, v0")
    I("v_and_b32 v2, 15, v0")
    I("v_readfirstlane_b32 s3, v1")
    I("v_bfe_u32 v3, v0, 4, 2")
    I("s_mul_i32 s4, s2, 43691")
    I("s_lshr_b32 s4, s4, 17")
    I("s_mul_i32 s5, s4, 3")
    I("s_sub_u32 s5, s2, s5")
    I("s_lshl_b32 s5, s5, 3")
    I("s_add_u32 s5, s5, s3")
    I("s_lshr_b32 s6, s5, 2")
    I("s_lshl_b32 s6, s6, 6")
    I("s_and_b32 s7, s5, 3")
    I("s_add_u32 s6, s6, s7")
    I("v_lshl_add_u32 v4, v2, 2, s6")
    I("v_and_b32 v5, 1, v3")
    I("v_lshlrev_b32 v5, 4, v5")
    I("v_lshrrev_b32 v6, 1, v3")
    I("v_lshl_add_u32 v5, v6, 2, v5")
    I("v_mul_u32_u24 v6, 768, v5")
    I("v_lshl_add_u32 v6, v4, 1, v6")
    I("s_mul_i32 s7, s4, %d" % (32 * 768))
    I("s_waitcnt lgkmcnt(0)")
    srd(8, 70, WF_BYTES)
    srd(12, 80, cfg.NREP * H * 4, OFF_SUM)
    srd(16, 80, WF_BYTES, OFF_W2S)
    srd(20, 72, H * 2)
    I("v_lshlrev_b32 v7, 2, v0")
    I("s_mov_b32 s24, 0")
    for r in range(cfg.NREP):
        for a in range(3):
            if a == 2:
                I("s_add_u32 s24, s24, 4096")
            I(f"buffer_load_dword v{32 + r*3 + a}, v7, s[12:15], s24 offen offset:{(a%2)*2048}")
        I("s_add_u32 s24, s24, 2048")
    I("s_add_u32 s25, s7, %d" % (8 * 768))
    for e in range(8):
        I(f"buffer_load_ushort v{8+e}, v6, s[8:11], s{7 if e < 4 else 25} offen offset:{(e%4)*768}")
    I("v_and_b32 v16, 31, v0")
    I("v_lshlrev_b32 v17, 1, v16")
    I("s_lshl_b32 s26, s4, 6")
    I("buffer_load_ushort v18, v17, s[20:23], s26 offen")
    I("s_waitcnt vmcnt(9)")
    for a in range(3):
        for r in range(1, cfg.NREP):
            I(f"v_add_f32 v{32+a}, v{32+a}, v{32+r*3+a}")
    I(f"s_mov_b32 s27, {f32(1.0/(GAMMA*GAMMA))}")
    I(f"v_mov_b32 v19, {f32(1e-6)}")
    for a in range(3):
        I(f"v_fma_f32 v{32+a}, v{32+a}, s27, v19")
    for a in range(3):
        I(f"v_sqrt_f32 v{32+a}, v{32+a}")
    I("s_nop 0")
    for a in range(3):
        I(f"ds_write_b32 v7, v{32+a} offset:{a*2048}")
    I("v_add_f32 v20, v32, v33")
    I("v_add_f32 v20, v20, v34")
    for ror in (8, 4, 2, 1):
        I("s_nop 1")
        I(f"v_add_f32_dpp v20, v20, v20 row_ror:{ror} row_mask:0xf bank_mask:0xf")
    for sw in ("v_permlane16_swap_b32", "v_permlane32_swap_b32"):
        I("v_mov_b32 v21, v20")
        I("s_nop 1")
        I(f"{sw} v20, v21")
        I("s_nop 1")
        I("v_add_f32 v20, v20, v21")
    I("v_lshlrev_b32 v21, 2, v1")
    I("ds_write_b32 v21, v20 offset:6144")
    I("s_waitcnt lgkmcnt(0)")
    I("s_barrier")
    I("v_mov_b32 v21, 0")
    I("ds_read_b128 v[24:27], v21 offset:6144")
    I("ds_read_b128 v[28:31], v21 offset:6160")
    I("s_lshl_b32 s26, s4, 7")
    I("v_lshl_add_u32 v22, v16, 2, s26")
    I("ds_read_b32 v23, v22")
    I("s_waitcnt lgkmcnt(0)")
    for i in range(1, 8):
        I(f"v_add_f32 v24, v24, v{24+i}")
    I(f"v_mov_b32 v25, {f32(1.0/H)}")
    I("v_fma_f32 v24, v24, v25, v19")
    I("v_rcp_f32 v24, v24")
    I("s_waitcnt vmcnt(0)")
    I("v_lshlrev_b32 v18, 16, v18")
    I("v_mul_f32 v23, v23, v24")
    I("v_fma_f32 v23, v23, v18, 1.0")
    I(f"v_mul_f32 v23, {f32(1.0/GAMMA)}, v23")
    I("v_lshlrev_b32 v21, 7, v1")
    I("v_lshl_add_u32 v22, v16, 2, v21")
    I("ds_write_b32 v22, v23 offset:6400")
    I("v_lshl_add_u32 v22, v5, 2, v21")
    I("s_waitcnt lgkmcnt(0)")
    I("ds_read_b128 v[24:27], v22 offset:6400")
    I("ds_read_b128 v[28:31], v22 offset:6432")
    for e in range(8):
        I(f"v_lshlrev_b32 v{8+e}, 16, v{8+e}")
    I("s_waitcnt lgkmcnt(0)")
    for e in range(8):
        I(f"v_mul_f32 v{8+e}, v{8+e}, v{24+e}")
    for i in range(4):
        I(f"v_cvt_pk_bf16_f32 v{24+i}, v{8+2*i}, v{9+2*i}")
    I("v_and_b32 v21, 63, v0")
    I("v_lshlrev_b32 v21, 4, v21")
    I("s_mul_i32 s28, s5, 43")
    I("s_lshr_b32 s28, s28, 8")
    I("s_mul_i32 s29, s28, 6")
    I("s_sub_u32 s29, s5, s29")
    I("s_lshr_b32 s30, s28, 1")
    I("s_and_b32 s28, s28, 1")
    I("s_and_b32 s26, s4, 0xfe")
    I("s_add_u32 s26, s26, s28")
    I("s_lshl_b32 s26, s26, 1")
    I("s_add_u32 s26, s26, s30")
    I("s_mul_i32 s26, s26, 12")
    I("s_lshl_b32 s29, s29, 1")
    I("s_add_u32 s26, s26, s29")
    I("s_and_b32 s29, s4, 1")
    I("s_add_u32 s26, s26, s29")
    I("s_lshl_b32 s26, s26, 10")
    I("buffer_store_dwordx4 v[24:27], v21, s[16:19], s26 offen")
    I("s_nop 1")
    stamp(2); stamp_out(3, 2, "km")
    I("s_endpgm")
    E("L_km_bias:")
    I("s_waitcnt lgkmcnt(0)")
    srd(8, 80, 48 * C * 4, OFF_BP)
    srd(12, 80, C * 4, OFF_BIAS)
    I("v_cmp_gt_u32 vcc, 384, v0")
    I("s_and_saveexec_b64 s[22:23], vcc")
    I("s_cbranch_execz L_km_end")
    I("v_lshlrev_b32 v1, 2, v0")
    I("s_mov_b32 s4, 0")
    for g in range(48):
        I(f"buffer_load_dword v{8+g}, v1, s[8:11], s4 offen offset:{(g%2)*1536}")
        if g % 2 == 1:
            I("s_add_u32 s4, s4, 3072")
    for g in range(1, 48):
        I(f"s_waitcnt vmcnt({47-g})")
        I(f"v_add_f32 v8, v8, v{8+g}")
    I("v_lshlrev_b32 v2, 2, v0")
    I("buffer_store_dword v8, v2, s[12:15], 0 offen")
    E("L_km_end:")
    I("s_endpgm")

K2_WSLOT = 24576
K2_HBASE = 4 * K2_WSLOT
K2_LDS = K2_HBASE + 2 * 24576
def gen_k2():
    assert NCW == 36
    NP = 48 * 72
    def acc(t, j):
        return ("v", 64 + (t * 4 + j) * 4) if j < 4 else ("a", (t * 2 + j - 4) * 4)
    def HF(par, k, j):
        return 96 + par * 24 + (k * 3 + j) * 4 if j < 3 else 144 + (k * 3 + j - 3) * 4
    WF = lambda G, k: 168 + ((G % 3) * 2 + k) * 4
    ar = lambda a, n=4: f"a[{a}:{a+n-1}]"
    rr_ = lambda fa, n=4: f"{fa[0]}[{fa[1]}:{fa[1]+n-1}]"
    V_WD, V_W0, V_W1, V_H, V_ST, V_BI, V_T, V_POOL, A_POOL = 1, 2, 3, 4, 5, 8, 20, 28, 192
    S_W, S_HO, S_HO2, S_WS, S_WS2, S_TILE, S_RND, S_XO, S_SO, S_HQ = 3, 4, 5, 6, 7, 26, 28, 40, 46, 29
    head("gemm2_kernel")
    I("s_cmp_ge_u32 s2, 256")
    I("s_cbranch_scc1 L_k2_end")
    stamp(0)
    load_args()
    I("v_lshrrev_b32 v32, 6, v0")
    I("v_and_b32 v33, 63, v0")
    I(f"v_readfirstlane_b32 s{S_W}, v32")
    I("v_lshlrev_b32 v33, 4, v33")
    I("v_and_b32 v34, 15, v0")
    I("v_bfe_u32 v35, v0, 4, 2")
    I(f"s_and_b32 s30, s{S_W}, 1")
    I(f"s_lshr_b32 s31, s{S_W}, 1")
    I(f"s_mul_i32 s32, s{S_W}, 6144")
    I(f"v_add_u32 v{V_WD}, s32, v33")
    I("s_mul_i32 s33, s30, 12288")
    I(f"v_add_u32 v{V_W0}, s33, v33")
    I(f"v_add_u32 v{V_W1}, {2*K2_WSLOT}, v{V_W0}")
    I("v_lshrrev_b32 v36, 1, v35")
    I(f"v_lshlrev_b32 v{V_H}, 8, v36")
    I("v_and_b32 v36, 3, v34")
    I(f"v_lshl_add_u32 v{V_H}, v36, 6, v{V_H}")
    I("v_lshrrev_b32 v36, 2, v34")
    I(f"v_lshl_add_u32 v{V_H}, v36, 4, v{V_H}")
    I("v_and_b32 v36, 1, v35")
    I(f"v_lshl_add_u32 v{V_H}, v36, 3, v{V_H}")
    I("s_mul_i32 s33, s31, 6144")
    I(f"s_add_u32 s33, s33, {K2_HBASE}")
    I(f"v_add_u32 v{V_H}, s33, v{V_H}")
    I(f"v_mul_u32_u24 v{V_ST}, 18432, v35")
    I(f"v_lshl_add_u32 v{V_ST}, v34, 3, v{V_ST}")
    I(f"s_mul_i32 s34, s31, {96*768}")
    I("s_mul_i32 s35, s30, 384")
    I("s_add_u32 s34, s34, s35")
    I(f"s_mov_b32 s{S_TILE}, s2")
    I(f"s_mov_b32 s{S_RND}, 0")
    for j in range(6): I(f"s_mov_b32 s{S_SO+j}, 0x40000000")
    I("s_waitcnt lgkmcnt(0)")
    srd(8, 80, H_WS_BYTES)
    srd(12, 64, X_BYTES)
    srd(16, 76, X_BYTES)
    srd(20, 80, C * 4, OFF_BIAS)
    srd(52, 80, WF_BYTES, OFF_W2S)
    I("s_add_u32 s56, s80, 24576")
    I("s_addc_u32 s57, s81, 0")
    I("s_sub_u32 s37, s76, 12288")
    I("s_subb_u32 s38, s77, 0")
    I("s_cmp_eq_u32 s31, 0")
    I("s_cselect_b32 s56, s56, s37")
    I("s_cselect_b32 s57, s57, s38")
    I(f"s_mov_b32 s58, {X_BYTES+12288:#x}")
    I(f"s_cselect_b32 s58, {H_WS_BYTES-24576:#x}, s58")
    I(f"s_mov_b32 s60, {12*12288}")
    I(f"s_cselect_b32 s60, {36*12288}, s60")
    I("s_movk_i32 s61, 12288")
    I("s_cselect_b32 s61, 36864, s61")
    I("s_and_b32 s57, s57, 0xffff")
    I("s_mov_b32 s59, 0x20000")
    I(f"s_mul_i32 s{S_HO}, s{S_TILE}, {36*12288}")
    I(f"s_mul_i32 s{S_HQ}, s{S_TILE}, s60")

    fixed = [[] for _ in range(NP)]
    before = [[] for _ in range(NP)]
    load = [0] * NP
    def put(pos, text, tag=None):
        pos %= NP
        fixed[pos].append((text, tag))
        if not text.startswith("s_"): load[pos] += 1
    def jorder(t):
        if t == 11: return [3, 4, 5, 0, 1, 2]
        return list(range(6)) if t % 2 == 0 else list(range(5, -1, -1))
    def w_read(G, k):
        n, tl = (G // 6) % 48, G % 6
        return f"ds_read_b128 {ar(WF(G,k))}, v{V_W0 if n % 4 < 2 else V_W1} offset:{(n%2)*K2_WSLOT + (tl*2+k)*1024}"
    def h_read(p, k, j, hf):
        return f"ds_read_b64_tr_b16 {ar(HF(p%2,k,j)+2*hf,2)}, v{V_H} offset:{(p%2)*24576 + k*12288 + j*1024 + hf*512}"
    def dma6(srd_, so, so2, lds, fl, tag):
        seq = []
        for k in range(6):
            pre = [f"s_add_u32 m0, s32, {lds + (4096 if k >= 4 else 0)}"] if k in (0, 4) else []
            seq.append((pre, f"buffer_load_dwordx4 v{V_WD}, {srd_}, s{so if k < 4 else so2} offen offset:{(k%4)*1024}{fl} lds", tag))
        return seq
    def w_dma(n):
        n %= 48
        return [f"s_mov_b32 s{S_WS}, {n*K2_WSLOT}", f"s_mov_b32 s{S_WS2}, {n*K2_WSLOT+4096}"], dma6("s[52:55]", S_WS, S_WS2, (n % 4) * K2_WSLOT, cfg.W2_FLAGS, ("W", n))
    def h_dma(p, first=False):
        p %= 24
        so = S_HO if p % 2 == 0 else S_HQ
        if p == 0 and not first:
            pre = [f"s_add_u32 s27, s{S_TILE}, 256", f"s_mul_i32 s{S_HO}, s27, {36*12288}", f"s_mul_i32 s{S_HQ}, s27, s60"]
        elif p < 2: pre = []
        else: pre = [f"s_add_u32 s{so}, s{so}, {36864 if p % 2 == 0 else 's61'}"]
        pre += [f"s_add_u32 s{S_HO2}, s{so}, 4096"]
        return pre, dma6("s[8:11]" if p % 2 == 0 else "s[56:59]", so, S_HO2, K2_HBASE + (p % 2) * 24576, cfg.H_LOAD_FLAGS, ("H", p))
    for n in range(48):
        base = n * 72
        p, hf = divmod(n, 2)
        for tl in range(6):
            G = n * 6 + tl
            for k in range(2):
                put(base + tl * 12 + 1 + 2 * k, w_read(G + 2, k), ("L", WF(G + 2, k)))
        if hf == 1:
            m = 0
            for j in range(3):
                for k in range(2):
                    for h2 in range(2):
                        put(base + 48 + m, h_read(p + 1, k, j, h2), ("L", HF((p + 1) % 2, k, j))); m += 1
            for idx, j in enumerate((3, 4, 5)):
                for k in range(2):
                    for h2 in range(2):
                        put(base + 60 + 2 * idx + k, h_read(p + 1, k, j, h2), ("L", HF(0, k, j)))
        before[base + 48].append(("BAR", [("W", (n + 1) % 48)] + ([("H", (p + 1) % 24)] if hf == 1 else [])))
        SCH = [int(v) for v in cfg.K2_SCH.split()]
        groups = [(w_dma(n + 4), SCH[0], SCH[1]), (h_dma(p + 2), SCH[2], SCH[3])] if hf == 0 else [(w_dma(n + 4), SCH[4], SCH[5])]
        for (pre, seq), p0, ds in groups:
            pos = base + 48 + p0
            if pos + 5 * ds >= NP:
                assert n == 47 and (pos + 3 * ds < NP or pos - 3 >= NP)
            for q_, o in enumerate(pre): put(pos - 2 - (len(pre) - 1 - q_) // 3, o)
            for pr, ld, tag in seq:
                for o in pr: put(pos - 1, o)
                if ('k2nodma' + tag[0]) not in cfg.ABL: put(pos, ld, ("V", tag))
                pos += ds
    def flow(items, cap):
        plan = []; pos = -10**9; used = {}
        for e, dl, ins in items:
            pos = max(pos, e)
            for it in ins:
                while load[pos % NP] + used.get(pos, 0) >= cap: pos += 1
                if pos > dl: return None
                plan.append((pos, it))
                if not it[0].startswith("s_"): used[pos] = used.get(pos, 0) + 1
        return plan
    def place(items):
        for cap in (1, 2, 3, 4, 5):
            plan = flow(items, cap)
            if plan is not None:
                for pos, (text, tag) in plan: put(pos, text, tag)
                return plan
        raise RuntimeError("does not fit")
    def st(reg, v, u):
        j, r = divmod(u, 4)
        sr = "s[16:19]" if 'k2nost' not in cfg.ABL else "s[20:23]"
        return (f"buffer_store_dwordx2 {reg}, v{V_ST}, {sr}, s{S_SO+j} offen offset:{r*768+v*128}{cfg.OUT_FLAGS}", ("V", ("S",)))
    hold = [("v", V_POOL + 2 * i) for i in range(18)] + [("a", A_POOL + 2 * i) for i in range(32)]
    hold = hold[:cfg.K2_HOLD]
    vh = [h for h in hold if h[0] == "v"]; ah = [h for h in hold if h[0] == "a"]
    conv = []; later_v = []; later_a = []
    c0 = 46 * 72
    cnt = 0; alt = 0
    for v in range(3):
        e = c0 + (4 * v + 4) * 12 + 8
        dl = NP + 4 * v * 12 - 2
        for u in range(24):
            j, r = divmod(u, 4)
            ins = []
            src = []
            for x in range(4):
                f, a = acc(4 * v + x, j)
                if f == "a":
                    ins.append((f"v_accvgpr_read_b32 v{V_T+x}, a{a+r}", None)); src.append(V_T + x)
                else: src.append(a + r)
            keep = (cnt + 1) * len(hold) // 72 > cnt * len(hold) // 72
            cnt += 1
            dst = None
            if keep:
                pool = (vh if (j >= 4 and vh) or not ah else ah)
                dst = pool.pop(0)
            if dst is not None and dst[0] == "v":
                o = dst[1]
            else:
                o = V_T + 4 + 2 * alt; alt ^= 1
            ins.append((f"v_cvt_pk_bf16_f32 v{o}, v{src[0]}, v{src[1]}", None))
            ins.append((f"v_cvt_pk_bf16_f32 v{o+1}, v{src[2]}, v{src[3]}", None))
            if dst is None: ins.append(st(f"v[{o}:{o+1}]", v, u))
            elif dst[0] == "v": later_v.append(st(f"v[{o}:{o+1}]", v, u))
            else:
                ins.append((f"v_accvgpr_write_b32 a{dst[1]}, v{o}", None))
                ins.append((f"v_accvgpr_write_b32 a{dst[1]+1}, v{o+1}", None))
                later_a.append(st(f"a[{dst[1]}:{dst[1]+1}]", v, u))
            conv.append((e, dl, ins))
    for j in range(6): put(c0 + 20 + j, f"s_mov_b32 s{S_SO+j}, s{S_XO+j}")
    conv_plan = place(conv)
    later = later_v + later_a
    t0, t1 = 2 * 72 + 20, cfg.K2_TEND * 72
    tr = []
    for i, it in enumerate(later):
        e = t0 + i * (t1 - t0) // max(1, len(later))
        tr.append((e, e + 40, [it]))
    place(tr)
    P0 = 10
    assert not later_v or tr[len(later_v) - 1][1] < (2 * P0 - 3) * 72
    xs = (2 * P0 - 3) * 72 - 12
    put(xs, f"s_mul_i32 s{S_XO}, s{S_TILE}, {TILE*768}")
    put(xs, f"s_add_u32 s{S_XO}, s{S_XO}, s34")
    for j in range(1, 6): put(xs + j, f"s_add_u32 s{S_XO+j}, s{S_XO}, {j*3072}")
    units = [0, 16, 1, 17, 2, 18, 3, 19, 4, 20, 5, 21, 6, 22, 7, 23, 8, 9, 10, 11, 12, 13, 14, 15]
    for P in range(P0, P0 + 12):
        lds_, adds = [], [[], []]
        for z in range(2):
            u = units[2 * (P - P0) + z]
            j, r = divmod(u, 4)
            sg = V_POOL + (P % 3) * 12 + 6 * z
            for v in range(3):
                e = (2 * P - 3) * 72 + int(cfg.K2_XP.split()[0]) + int(cfg.K2_XP.split()[1]) * (3 * z + v)
                if 'k2nox' not in cfg.ABL:
                    lds_.append((e, e + 30, [(f"buffer_load_dwordx2 v[{sg+2*v}:{sg+2*v+1}], v{V_ST}, s[12:15], s{S_XO+j} offen offset:{r*768+v*128}{cfg.X2_FLAGS}", ("V", ("X", u)))]))
            for hp in range(2):
                ins = [("WAITV", [("X", u)])]
                for e0 in (0, 3):
                    ts = [6 * hp + e0 + x for x in range(3)]
                    for x, t in enumerate(ts):
                        sreg = sg + t // 2
                        ins.append((f"v_lshlrev_b32 v{V_T+x}, 16, v{sreg}" if t % 2 == 0 else f"v_and_b32 v{V_T+x}, s36, v{sreg}", None))
                    if j >= 4:
                        for x, t in enumerate(ts): ins.append((f"v_accvgpr_read_b32 v{V_T+4+x}, a{acc(t,j)[1]+r}", None))
                    for x, t in enumerate(ts): ins.append((f"v_add_f32 v{V_T+x}, v{V_T+x}, v{V_BI+t}", None))
                    for x, t in enumerate(ts):
                        f, a = acc(t, j)
                        ins.append((f"v_add_f32 v{a+r}, v{V_T+x}, v{a+r}" if f == "v" else f"v_add_f32 v{V_T+x}, v{V_T+x}, v{V_T+4+x}", None))
                    if j >= 4:
                        for x, t in enumerate(ts): ins.append((f"v_accvgpr_write_b32 a{acc(t,j)[1]+r}, v{V_T+x}", None))
                b = (2 * P + 1 + hp) * 72
                ins = [("s_nop 0", i_) if i_[0] == "WAITV" else i_ for i_ in ins]
                adds[hp].append((b + 9, b + 67, ins))
        place(lds_); place(adds[0]); place(adds[1])

    def mfma(pos):
        n, k_ = divmod(pos, 72)
        p, hf = divmod(n, 2)
        tl, rem = divmod(k_, 12)
        t = 6 * hf + tl
        j = jorder(t)[rem // 2]; k = rem % 2
        a, b = HF(p % 2, k, j), WF(n * 6 + tl, k)
        c = "0" if (p == 0 and k == 0) else rr_(acc(t, j))
        return f"v_mfma_f32_16x16x32_bf16 {rr_(acc(t,j))}, {ar(a)}, {ar(b)}, {c}", (a, b)
    vq = {}; lq = {}; st_ = {"v": 0, "l": 0, "vd": 0, "ld": 0}
    def need_v(tags):
        m = max([vq.get(t, 0) for t in tags] + [0])
        if m <= st_["vd"]: return None
        st_["vd"] = m
        return min(62, st_["v"] - m)
    def run(emit):
        for pos in range(NP):
            text, regs = mfma(pos)
            bar = before[pos]
            if bar:
                nv = need_v(bar[0][1])
                st_["ld"] = st_["l"]
                if emit:
                    I(f"s_waitcnt vmcnt({nv}) lgkmcnt(0)" if nv is not None else "s_waitcnt lgkmcnt(0)")
                    if (pos // 72) % 4 == 0: tick(100 + pos // 72, S_W, key='tick2', vr0=6)
                    I("s_barrier")
            m = max(lq.get(r_, 0) for r_ in regs)
            if m > st_["ld"]:
                nl = min(14, st_["l"] - m)
                st_["ld"] = st_["l"] - nl
                if emit: I(f"s_waitcnt lgkmcnt({nl})")
            if emit: I(text if 'k2nomfma' not in cfg.ABL else "s_nop 0")
            for text, tag in fixed[pos]:
                if tag and tag[0] == "WAITV":
                    nv = need_v(tag[1])
                    if emit and nv is not None: I(f"s_waitcnt vmcnt({nv})")
                    continue
                if tag and tag[0] == "L":
                    st_["l"] += 1; lq[tag[1]] = st_["l"]
                if tag and tag[0] == "V":
                    st_["v"] += 1; vq[tag[1]] = st_["v"]
                if emit: I(text)
    tick(1, S_W, init=True, key='tick2', vr0=6)
    I("v_lshlrev_b32 v36, 4, v34")
    I("s_lshl_b32 s33, s35, 1")
    I("s_mov_b32 s36, 0xffff0000")
    for pre, seq in (h_dma(0, True), w_dma(0), w_dma(1), h_dma(1), w_dma(2), w_dma(3)):
        for o in pre: I(o)
        for pr, ld, tag in seq:
            for o in pr: I(o); I("s_nop 0")
            I(ld)
    for v in range(3):
        I(f"buffer_load_dwordx4 {vr(V_BI+4*v)}, v36, s[20:23], s33 offen offset:{v*256}")
    ncp = 0
    if cfg.K2_CPF:
        I("s_getpc_b64 s[24:25]")
        E("L_k2_pc:")
        I("v_lshlrev_b32 v37, 7, v0")
        I("v_min_u32 v38, L_k2_end-L_k2_pc-0x8000, v37")
        I("v_add_u32 v38, 0x8000, v38")
        I("global_load_dword v39, v37, s[24:25]")
        I("global_load_dword v40, v38, s[24:25]")
        ncp = 2
    I(f"s_waitcnt vmcnt({27+ncp})")
    I("s_barrier")
    for G in range(2):
        for k in range(2): I(w_read(G, k))
    for j in range(6):
        for k in range(2):
            for h2 in range(2): I(h_read(0, k, j, h2))
    I("s_waitcnt vmcnt(0) lgkmcnt(0)")
    tick(2, S_W, key='tick2', vr0=6)
    run(False)
    E(".p2align 6")
    E("L_k2_cycle:")
    run(True)
    I(f"s_add_u32 s{S_RND}, s{S_RND}, 1")
    I(f"s_add_u32 s{S_TILE}, s{S_TILE}, 256")
    I(f"s_cmp_lt_u32 s{S_RND}, 3")
    I("s_cbranch_scc1 L_k2_cycle")
    stamp(1)
    I("s_nop 7")
    for pos, (text, tag) in conv_plan:
        if pos >= NP:
            I(text)
            if text.startswith("buffer_store"): I("s_nop 0")
    for text, tag in later: I(text)
    tick(3, S_W, key='tick2', vr0=6)
    stamp(2)
    stamp_out(S_W, 3, "k2")
    E("L_k2_end:")
    I("s_endpgm")
    return K2_LDS

def descriptor(name, vgpr, sgpr=102, acc=None):
    E(".p2align 6")
    E(f".amdhsa_kernel {name}")
    E(f"  .amdhsa_next_free_vgpr {vgpr}")
    E(f"  .amdhsa_next_free_sgpr {sgpr}")
    E(f"  .amdhsa_accum_offset {acc or (vgpr+3)//4*4}")
    E("  .amdhsa_group_segment_fixed_size 0")
    E("  .amdhsa_kernarg_size 72")
    E("  .amdhsa_user_sgpr_count 2")
    E("  .amdhsa_user_sgpr_kernarg_segment_ptr 1")
    E("  .amdhsa_system_sgpr_workgroup_id_x 1")
    E(".end_amdhsa_kernel")

E('.amdgcn_target "amdgcn-amd-amdhsa--gfx950"')
E(".text")
gen_k0()
gen_k1()
gen_kmid()
k2_lds = gen_k2()
E('.section .rodata,"a"')
descriptor("prep_kernel", 48)
descriptor("ln_gemm1_kernel", 256)
descriptor("grn_kernel", 64 if cfg.NREP <= 8 else 96)
descriptor("gemm2_kernel", 512, acc=256)

hdr = f"""; SLaK / ConvNeXt-v2 style block, K=1 depthwise: out = x + GRN(gelu(LN(x*dw) @ w1)) @ w2
;   grn      : GRN scale folded into w2 (fragment order), bias table
; @launch kernel=prep_kernel grid=(336,1,1) block=(256,1,1) lds=0
; @launch kernel=ln_gemm1_kernel grid=(256,1,1) block=(512,1,1) lds={K1_LDS}
; @launch kernel=grn_kernel grid=(145,1,1) block=(512,1,1) lds=8192
; @launch kernel=gemm2_kernel grid=(256,1,1) block=(256,1,1) lds={k2_lds}
"""
open(sys.argv[1], "w").write(hdr + "\n".join(out) + "\n")
```
